```python
import torch

def _softmax(x, axis=-1):
    return torch.softmax(x, dim=axis)
def _gelu(x):
    return torch.nn.functional.gelu(x, approximate="tanh")
def _silu(x):
    return torch.nn.functional.silu(x)
def _sigmoid(x):
    return torch.sigmoid(x)
def _layernorm(x, axis=-1, eps=1e-5):
    m = x.mean(dim=axis, keepdim=True)
    v = x.var(dim=axis, keepdim=True, unbiased=False)
    return (x - m) / torch.sqrt(v + eps)
def _scatter_add(tgt, idx, src, axis=0):
    return tgt.clone().index_add_(axis, idx, src)
def _segment_sum(src, seg, n):
    out = torch.zeros((n,) + src.shape[1:], dtype=src.dtype)
    return out.index_add_(0, seg, src)
def _pad(x, pw):
    flat = tuple(v for pair in reversed(pw) for v in pair)
    return torch.nn.functional.pad(x, flat)

kernel_name = 'parallel_sum__linear_kernel_hedgehog__dense_activation_squared_relu__prompt'

def setup_inputs():

    _w = (lambda a: (lambda t: t.to(torch.bfloat16) if t.is_floating_point() else t)(torch.as_tensor(a)))
    def _A_setup():
        B, S, D, H = 1, 2048, 1024, 32
        Dh = D // H
        return {
            "x": _w((lambda *s: torch.randn(*s, dtype=torch.bfloat16) * 0.05)(B, S, D)),
            "wqkv": _w((lambda *s: torch.randn(*s, dtype=torch.bfloat16) * 0.8)(D, 3 * D)),
            "w_phi": _w((lambda *s: torch.randn(*s, dtype=torch.bfloat16) * 0.8)(H, Dh, Dh) * (Dh ** -0.5)),
            "wo": _w((lambda *s: torch.randn(*s, dtype=torch.bfloat16) * 0.2)(D, D)),
        }
    _A_in = _A_setup()

    def _B_setup():
        B, S, D, F = 1, 2048, 1024, 3584
        return {
            "x": _w((lambda *s: torch.randn(*s, dtype=torch.bfloat16) * 0.05)(B, S, D)),
            "w1": _w((lambda *s: torch.randn(*s, dtype=torch.bfloat16) * 0.05)(D, F)),
            "b1": _w((lambda *s: torch.randn(*s, dtype=torch.bfloat16) * 1.6)(F)),
            "w2": _w((lambda *s: torch.randn(*s, dtype=torch.bfloat16) * 0.05)(F, D)),
            "b2": _w((lambda *s: torch.randn(*s, dtype=torch.bfloat16) * 12.8)(D)),
        }
    _B_in = _B_setup()

    return {
        "A_x": _A_in["x"],
        "A_wqkv": _A_in["wqkv"],
        "A_w_phi": _A_in["w_phi"],
        "A_wo": _A_in["wo"],
        "B_x": _B_in["x"],
        "B_w1": _B_in["w1"],
        "B_b1": _B_in["b1"],
        "B_w2": _B_in["w2"],
        "B_b2": _B_in["b2"],
    }

def reference(A_x, A_wqkv, A_w_phi, A_wo, B_x, B_w1, B_b1, B_w2, B_b2):
    def _A_ref(x, wqkv, w_phi, wo):
        B, S, D = x.shape
        H = 32; Dh = D // H
        qkv = (lambda x, *d: x.permute(*d))((x @ wqkv).reshape(B, S, 3, H, Dh), 2, 0, 3, 1, 4)
        q, k, v = qkv[0], qkv[1], qkv[2]
        pq = torch.einsum("bhsd,hdf->bhsf", q, w_phi)
        pk = torch.einsum("bhsd,hdf->bhsf", k, w_phi)
        phi_q = torch.concatenate([_softmax(pq, axis=-1), _softmax(-pq, axis=-1)], axis=-1)
        phi_k = torch.concatenate([_softmax(pk, axis=-1), _softmax(-pk, axis=-1)], axis=-1)
        kv = torch.einsum("bhsf,bhsd->bhfd", phi_k, v)
        z  = torch.einsum("bhsf->bhf", phi_k)
        num = torch.einsum("bhqf,bhfd->bhqd", phi_q, kv)
        den = torch.einsum("bhqf,bhf->bhq", phi_q, z)[..., None] + 1e-6
        o = num / den
        return (lambda x, *d: x.permute(*d))(o, 0, 2, 1, 3).reshape(B, S, D) @ wo

    def _B_ref(x, w1, b1, w2, b2):
        h = torch.einsum("bsd,df->bsf", x, w1) + b1
        zero = torch.zeros_like(h)
        r = torch.where(h > zero, h, zero)
        h = r * r
        out = torch.einsum("bsf,fd->bsd", h, w2) + b2
        return out

    x = A_x
    xn = _layernorm(x, axis=-1)
    return x + _A_ref(xn, A_wqkv, A_w_phi, A_wo) + _B_ref(xn, B_w1, B_b1, B_w2, B_b2)
```

```python
import re

TRANS = ('v_exp_f32', 'v_log_f32', 'v_rcp_f32', 'v_rsq_f32', 'v_sqrt_f32', 'v_sin_f32', 'v_cos_f32', 'v_rcp_iflag_f32')

def parse_regs(tok):
    tok = tok.strip()
    tok = tok.lstrip('-')
    m = re.match(r'^\|?abs\((.*)\)$', tok)
    if m: tok = m.group(1)
    tok = tok.strip('|')
    m = re.match(r'^([vas])(\d+)$', tok)
    if m: return [(m.group(1), int(m.group(2)))]
    m = re.match(r'^([vas])\[(\d+):(\d+)\]$', tok)
    if m: return [(m.group(1), i) for i in range(int(m.group(2)), int(m.group(3)) + 1)]
    if tok == 'vcc': return [('s', 'vcc')]
    if tok == 'm0': return [('s', 'm0')]
    if tok == 'exec': return [('s', 'exec')]
    return []

def split_ops(s):
    out, depth, cur = [], 0, ''
    for ch in s:
        if ch in '[(': depth += 1
        if ch in '])': depth -= 1
        if ch == ',' and depth == 0:
            out.append(cur.strip()); cur = ''
        else:
            cur += ch
    if cur.strip(): out.append(cur.strip())
    return out

class Ins:
    __slots__ = ('text', 'mn', 'kind', 'wr', 'rd', 'srcc', 'ab', 'passes', 'states', 'dpp', 'wide_store_data', 'lds_dma', 'sdwa')

def analyze(text):
    I = Ins()
    I.text = text
    body = text.split(';')[0].strip()
    parts = body.split(None, 1)
    mn = parts[0]
    I.mn = mn
    rest = parts[1] if len(parts) > 1 else ''
    ops = split_ops(rest)
    toks = []
    mods = []
    for o in ops:
        p = o.split()
        toks.append(p[0] if p else '')
        mods += p[1:]
    I.wr, I.rd, I.srcc, I.ab = [], [], [], []
    I.passes = 0
    I.states = 1
    I.dpp = ('_dpp' in mn) or any(m.startswith(('row_', 'quad_perm', 'wave_')) for m in mods)
    I.sdwa = '_sdwa' in mn
    I.wide_store_data = []
    I.lds_dma = False
    R = [parse_regs(t) for t in toks]
    if mn == 's_nop':
        I.kind = 'nop'; I.states = int(toks[0], 0) + 1
    elif mn.startswith('v_mfma'):
        I.kind = 'mfma'
        I.passes = 8 if '32x32' in mn else 4
        I.wr = R[0]; I.ab = R[1] + R[2]; I.srcc = R[3]; I.rd = I.ab + I.srcc
    elif mn.startswith('v_'):
        I.kind = 'trans' if mn.replace('_e32', '').replace('_e64', '') in TRANS else 'valu'
        if mn.startswith('v_cmp'):
            I.wr = R[0]; I.rd = sum(R[1:], [])
        elif mn.startswith(('v_permlane32_swap', 'v_permlane16_swap')):
            I.kind = 'permlane'; I.wr = R[0] + R[1]; I.rd = R[0] + R[1]
        elif mn.startswith(('v_readfirstlane', 'v_readlane')):
            I.kind = 'readlane'; I.wr = R[0]; I.rd = sum(R[1:], [])
        elif mn.startswith(('v_add_co', 'v_sub_co', 'v_addc_co', 'v_subb_co')):
            I.wr = R[0] + R[1]; I.rd = sum(R[2:], [])
        else:
            I.wr = R[0]; I.rd = sum(R[1:], [])
            if mn.startswith(('v_fmac', 'v_dot2c', 'v_pk_fmac', 'v_writelane')) or I.dpp or I.sdwa:
                I.rd = I.rd + R[0]
            if mn.startswith('v_cndmask') and len(toks) == 3:
                I.rd = I.rd + [('s', 'vcc')]
    elif mn.startswith(('buffer_', 'global_')):
        I.kind = 'vmem'
        islds = ('lds' in mods) or ('_lds_' in mn)
        I.lds_dma = islds
        if 'load' in mn and not islds:
            I.wr = R[0]; I.rd = sum(R[1:], [])
        elif 'atomic' in mn and 'sc0' in mods:
            I.wr = R[0]; I.rd = sum(R, [])
        else:
            I.rd = sum(R, [])
            if 'store' in mn and (mn.endswith('x4') or mn.endswith('x3')):
                I.wide_store_data = R[0] if mn.startswith('buffer_') else R[1]
        if islds: I.rd = I.rd + [('s', 'm0')]
    elif mn.startswith('ds_'):
        I.kind = 'ds'
        if mn.startswith(('ds_read', 'ds_bpermute', 'ds_permute', 'ds_swizzle')):
            I.wr = R[0]; I.rd = sum(R[1:], [])
        else:
            I.rd = sum(R, [])
    elif mn.startswith('s_'):
        I.kind = 'salu'
        if mn.startswith(('s_cmp', 's_waitcnt', 's_barrier', 's_branch', 's_cbranch', 's_endpgm', 's_setprio', 's_sleep', 's_bitcmp')):
            I.rd = sum(R, [])
        else:
            I.wr = R[0] if R else []
            I.rd = sum(R[1:], [])
            if 'saveexec' in mn: I.wr = I.wr + [('s', 'exec')]
    else:
        raise ValueError('unknown instr ' + text)
    return I

VALUISH = ('valu', 'trans', 'permlane', 'readlane')

def need(prod, cons):
    n = 0
    pw = set(prod.wr); cr = set(cons.rd); cw = set(cons.wr)
    pv = {r for r in pw if r[0] in 'va'}
    ps = {r for r in pw if r[0] == 's'}
    if prod.kind in VALUISH:
        if cons.kind == 'mfma' and pv & cr: n = max(n, 2)
        if cons.kind == 'permlane' and pv & cr: n = max(n, 2)
        if cons.dpp and pv & cr: n = max(n, 2)
        if cons.kind == 'readlane' and pv & cr: n = max(n, 1)
        if prod.kind == 'trans' and cons.kind in VALUISH + ('mfma',) and cons.kind != 'trans' and pv & cr: n = max(n, 1)
        if prod.kind == 'trans' and cons.kind in ('vmem', 'ds') and pv & cr: n = max(n, 1)
        if prod.sdwa and cons.kind in VALUISH and pv & (cr | cw): n = max(n, 1)
        if ps:
            if cons.kind in VALUISH and ps & cr: n = max(n, 4 if cons.kind == 'readlane' else 2)
            if cons.kind == 'vmem' and ps & cr: n = max(n, 5)
            if cons.kind == 'salu' and ps & cr: n = max(n, 1)
    if prod.kind == 'mfma':
        p = prod.passes
        if cons.kind == 'mfma':
            if pv & set(cons.ab): n = max(n, 8 if p == 4 else 12)
            if pv & set(cons.srcc):
                if not (prod.wr == cons.srcc and p == cons.passes): n = max(n, 6 if p == 4 else 10)
            if pv & cw and not (pv & set(cons.srcc)): n = max(n, 6 if p == 4 else 10)
        elif cons.kind in VALUISH or cons.kind in ('vmem', 'ds'):
            if pv & (cr | cw): n = max(n, 8 if p == 4 else 12)
        if cons.kind in VALUISH and set(prod.srcc) & cw: n = max(n, 3 if p == 4 else 7)
    if prod.kind == 'salu' and ('s', 'm0') in pw and cons.lds_dma: n = max(n, 1)
    if prod.wide_store_data and set(prod.wide_store_data) & cw:
        n = max(n, 2 if cons.kind in VALUISH else 1)
    return n

class Asm:
    def __init__(self):
        self.out = []
        self.hist = []
        self.nops = 0
    def raw(self, line):
        self.out.append(line)
    def label(self, name):
        self.out.append(name + ':')
    def comment(self, c):
        self.out.append('    ; ' + c)
    def __call__(self, text):
        for t in text.strip().split('\n'):
            t = t.strip()
            if not t or t.startswith(';'): continue
            self._emit(t)
    def _emit(self, text):
        I = analyze(text)
        pad = 0
        dist = 0
        for P in reversed(self.hist):
            n = need(P, I)
            if n > dist: pad = max(pad, n - dist)
            dist += P.states
            if dist > 20: break
        while pad > 0:
            k = min(pad, 16)
            N = analyze('s_nop %d' % (k - 1))
            self.out.append('    s_nop %d' % (k - 1))
            self.hist.append(N); self.nops += 1
            pad -= k
        self.out.append('    ' + text)
        self.hist.append(I)
        if len(self.hist) > 40: self.hist = self.hist[-40:]
    def fence(self, n=12):
        self('s_nop %d' % (n - 1))
    def text(self):
        return '\n'.join(self.out) + '\n'

def vr(a, n=1):
    return 'v%d' % a if n == 1 else 'v[%d:%d]' % (a, a + n - 1)
def ar(a, n=1):
    return 'a%d' % a if n == 1 else 'a[%d:%d]' % (a, a + n - 1)
def sr(a, n=1):
    return 's%d' % a if n == 1 else 's[%d:%d]' % (a, a + n - 1)
```

```python
import sys
from asmlib import *

NAME = 'parallel_sum__linear_kernel_hedgehog__dense_activation_squared_relu__prompt'
XN_OFF = 0
HO_OFF = 4 << 20
HO_BYTES = 144 * 128 * 1024
PQ_OFF = 24 << 20
KV_OFF = 32 << 20
KV_STRIDE = 9216
WS_BYTES = 40 << 20
LOG2E = 0x3fb8aa3b

HEADER = open('cdna_kernels/%s.s.ref' % NAME).read().split('; Override launch')[0]

def srd(a, d, base_lo, base_hi, nrec):
    a(f's_mov_b32 s{d}, s{base_lo}')
    a(f's_mov_b32 s{d+1}, s{base_hi}')
    a(f's_mov_b32 s{d+2}, {nrec}')
    a(f's_mov_b32 s{d+3}, 0x00020000')

def srd_off(a, d, base_lo, base_hi, off, nrec):
    a(f's_add_u32 s{d}, s{base_lo}, {off}')
    a(f's_addc_u32 s{d+1}, s{base_hi}, 0')
    a(f's_mov_b32 s{d+2}, {nrec}')
    a(f's_mov_b32 s{d+3}, 0x00020000')

def kstart(a, name):
    a.raw('.text')
    a.raw(f'.globl {name}')
    a.raw('.p2align 8')
    a.raw(f'.type {name},@function')
    a.label(name)
    a.hist = []

def kdesc(name, vgpr, sgpr=96, accum=None):
    if accum is None: accum = (vgpr + 3) // 4 * 4
    return f'''.section .rodata,"a"
.p2align 6
.amdhsa_kernel {name}
  .amdhsa_next_free_vgpr {vgpr}
  .amdhsa_next_free_sgpr {sgpr}
  .amdhsa_accum_offset {accum}
  .amdhsa_group_segment_fixed_size 0
  .amdhsa_kernarg_size 96
  .amdhsa_user_sgpr_count 2
  .amdhsa_user_sgpr_kernarg_segment_ptr 1
  .amdhsa_system_sgpr_workgroup_id_x 1
.end_amdhsa_kernel
'''

def xreduce(a, op, v, t):
    a(f'v_mov_b32 v{t}, v{v}')
    a(f'v_permlane32_swap_b32 v{v}, v{t}')
    a(f'{op} v{v}, v{v}, v{t}')
    a(f'v_mov_b32 v{t}, v{v}')
    a(f'v_permlane16_swap_b32 v{v}, v{t}')
    a(f'{op} v{v}, v{v}, v{t}')

def round_bf16(a, v, t=None):
    a(f'v_cvt_pk_bf16_f32 v{v}, v{v}, v{v}')
    a(f'v_and_b32 v{v}, 0xffff0000, v{v}')

def gen_ln(a):
    name = 'ln_kernel'
    kstart(a, name)
    a('s_cmp_ge_u32 s2, 128')
    a('s_cbranch_scc1 L_ln_done')
    a('s_load_dwordx2 s[4:5], s[0:1], 0')
    a('s_load_dwordx2 s[6:7], s[0:1], 88')
    a('v_and_b32 v1, 63, v0')
    a('v_lshrrev_b32 v2, 6, v0')
    a('v_and_b32 v3, 15, v1')
    a('v_lshrrev_b32 v4, 4, v1')
    a('s_lshl_b32 s3, s2, 15')
    a('v_lshlrev_b32 v5, 11, v3')
    a('v_lshl_add_u32 v5, v2, 8, v5')
    a('v_lshl_add_u32 v5, v4, 4, v5')
    a('v_add_u32 v5, s3, v5')
    a('s_waitcnt lgkmcnt(0)')
    srd(a, 8, 4, 5, 4 << 20)
    srd(a, 12, 6, 7, 4 << 20)
    for c in range(4):
        a(f'buffer_load_dwordx4 v[{8+4*c}:{11+4*c}], v5, s[8:11], 0 offen offset:{64*c}')
    a('v_lshlrev_b32 v6, 19, v2')
    a('v_lshl_add_u32 v6, v1, 4, v6')
    a('s_lshl_b32 s3, s2, 10')
    a('v_add_u32 v6, s3, v6')
    a('v_lshlrev_b32 v7, 5, v3')
    a('v_lshl_add_u32 v60, v2, 2, v7')
    a('s_waitcnt vmcnt(0)')
    F = 24
    for d in range(16):
        a(f'v_lshlrev_b32 v{F+2*d}, 16, v{8+d}')
        a(f'v_and_b32 v{F+2*d+1}, 0xffff0000, v{8+d}')
    a(f'v_add_f32 v56, v{F}, v{F+1}')
    a(f'v_add_f32 v57, v{F+2}, v{F+3}')
    for e in range(4, 32, 2):
        a(f'v_add_f32 v56, v56, v{F+e}')
        a(f'v_add_f32 v57, v57, v{F+e+1}')
    a('v_add_f32 v56, v56, v57')
    xreduce(a, 'v_add_f32', 56, 57)
    a('ds_write_b32 v60, v56')
    a('s_waitcnt lgkmcnt(0)')
    a('s_barrier')
    a('ds_read_b128 v[8:11], v7')
    a('ds_read_b128 v[12:15], v7 offset:16')
    a('s_waitcnt lgkmcnt(0)')
    for e in range(9, 16):
        a(f'v_add_f32 v8, v8, v{e}')
    a('v_mul_f32 v58, 0x3a800000, v8')
    a(f'v_sub_f32 v8, v{F}, v58')
    a(f'v_mul_f32 v56, v8, v8')
    a(f'v_sub_f32 v9, v{F+1}, v58')
    a(f'v_mul_f32 v57, v9, v9')
    for e in range(2, 32, 2):
        a(f'v_sub_f32 v8, v{F+e}, v58')
        a(f'v_sub_f32 v9, v{F+e+1}, v58')
        a(f'v_fmac_f32 v56, v8, v8')
        a(f'v_fmac_f32 v57, v9, v9')
    a('v_add_f32 v56, v56, v57')
    xreduce(a, 'v_add_f32', 56, 57)
    a('ds_write_b32 v60, v56 offset:512')
    a('s_waitcnt lgkmcnt(0)')
    a('s_barrier')
    a('ds_read_b128 v[8:11], v7 offset:512')
    a('ds_read_b128 v[12:15], v7 offset:528')
    a('s_waitcnt lgkmcnt(0)')
    for e in range(9, 16):
        a(f'v_add_f32 v8, v8, v{e}')
    a('v_mul_f32 v59, 0x3a800000, v8')
    round_bf16(a, 58)
    round_bf16(a, 59)
    a('v_add_f32 v59, 0x3727c5ac, v59')
    round_bf16(a, 59)
    a('v_sqrt_f32 v59, v59')
    round_bf16(a, 59)
    a('v_rcp_f32 v59, v59')
    for d in range(16):
        a(f'v_sub_f32 v{F+2*d}, v{F+2*d}, v58')
        a(f'v_sub_f32 v{F+2*d+1}, v{F+2*d+1}, v58')
        a(f'v_cvt_pk_bf16_f32 v{8+d}, v{F+2*d}, v{F+2*d+1}')
        a(f'v_lshlrev_b32 v{F+2*d}, 16, v{8+d}')
        a(f'v_and_b32 v{F+2*d+1}, 0xffff0000, v{8+d}')
        a(f'v_mul_f32 v{F+2*d}, v{F+2*d}, v59')
        a(f'v_mul_f32 v{F+2*d+1}, v{F+2*d+1}, v59')
        a(f'v_cvt_pk_bf16_f32 v{8+d}, v{F+2*d}, v{F+2*d+1}')
    a('s_mov_b32 s16, 0x20000')
    a('s_mov_b32 s17, 0x40000')
    a('s_mov_b32 s18, 0x60000')
    a('buffer_store_dwordx4 v[8:11], v6, s[12:15], 0 offen')
    a('buffer_store_dwordx4 v[12:15], v6, s[12:15], s16 offen')
    a('buffer_store_dwordx4 v[16:19], v6, s[12:15], s17 offen')
    a('buffer_store_dwordx4 v[20:23], v6, s[12:15], s18 offen')
    a.label('L_ln_done')
    a('s_endpgm')
    return name, '(128,1,1)', '(512,1,1)', 1024, kdesc(name, 64, 32)

class VM:
    def __init__(self): self.ops = []
    def issue(self, tag): self.ops.append(tag)
    def need(self, tag):
        for i in range(len(self.ops) - 1, -1, -1):
            if self.ops[i] == tag: return len(self.ops) - 1 - i
        raise KeyError(tag)

def dual_softmax(a, P, T, OUT):
    mx, mn, t0, t1 = T, T + 1, T + 2, T + 3
    EP, EM = T + 4, T + 12
    for j in range(0, 8, 2):
        a(f'v_cvt_pk_bf16_f32 v{t0}, v{P+j}, v{P+j+1}')
        a(f'v_lshlrev_b32 v{P+j}, 16, v{t0}')
        a(f'v_and_b32 v{P+j+1}, 0xffff0000, v{t0}')
    a(f'v_max3_f32 v{mx}, v{P}, v{P+1}, v{P+2}')
    a(f'v_min3_f32 v{mn}, v{P}, v{P+1}, v{P+2}')
    a(f'v_max3_f32 v{mx}, v{mx}, v{P+3}, v{P+4}')
    a(f'v_min3_f32 v{mn}, v{mn}, v{P+3}, v{P+4}')
    a(f'v_max3_f32 v{mx}, v{mx}, v{P+5}, v{P+6}')
    a(f'v_min3_f32 v{mn}, v{mn}, v{P+5}, v{P+6}')
    a(f'v_max_f32 v{mx}, v{mx}, v{P+7}')
    a(f'v_min_f32 v{mn}, v{mn}, v{P+7}')
    xreduce(a, 'v_max_f32', mx, t0)
    xreduce(a, 'v_min_f32', mn, t1)
    for j in range(8):
        a(f'v_sub_f32 v{EP+j}, v{P+j}, v{mx}')
        a(f'v_sub_f32 v{EM+j}, v{mn}, v{P+j}')
    for j in range(8):
        a(f'v_mul_f32 v{EP+j}, s40, v{EP+j}')
        a(f'v_mul_f32 v{EM+j}, s40, v{EM+j}')
    for j in range(8):
        a(f'v_exp_f32 v{EP+j}, v{EP+j}')
        a(f'v_exp_f32 v{EM+j}, v{EM+j}')
    a(f'v_add_f32 v{mx}, v{EP}, v{EP+1}')
    a(f'v_add_f32 v{mn}, v{EM}, v{EM+1}')
    for j in range(2, 8):
        a(f'v_add_f32 v{mx}, v{mx}, v{EP+j}')
        a(f'v_add_f32 v{mn}, v{mn}, v{EM+j}')
    xreduce(a, 'v_add_f32', mx, t0)
    xreduce(a, 'v_add_f32', mn, t1)
    a(f'v_rcp_f32 v{mx}, v{mx}')
    a(f'v_rcp_f32 v{mn}, v{mn}')
    for j in range(8):
        a(f'v_mul_f32 v{EP+j}, v{EP+j}, v{mx}')
        a(f'v_mul_f32 v{EM+j}, v{EM+j}, v{mn}')
    for j in range(4):
        a(f'v_cvt_pk_bf16_f32 v{OUT+j}, v{EP+2*j}, v{EP+2*j+1}')
        a(f'v_cvt_pk_bf16_f32 v{OUT+4+j}, v{EM+2*j}, v{EM+2*j+1}')

def gen_g1(a, NS=6, LA=6, cfg=None):
    name = 'g1_kernel'
    STG = 26624
    RG = 3328
    PD = NS - 2
    WPHI_LDS = NS * STG
    LDS = NS * STG + 2048
    ACC = 24; BF = 128; AF = 180
    def acc(ct, rt): return ACC + (ct * 2 + rt) * 4
    kstart(a, name)
    a('s_cmp_ge_u32 s2, 256')
    a('s_cbranch_scc1 L_g1_done')
    a('s_load_dwordx4 s[4:7], s[0:1], 8')
    a('s_load_dwordx4 s[8:11], s[0:1], 40')
    a('s_load_dwordx2 s[12:13], s[0:1], 88')
    a('s_and_b32 s14, s2, 7')
    a('s_lshr_b32 s15, s2, 3')
    a('s_and_b32 s16, s15, 7')
    a('s_lshr_b32 s15, s15, 3')
    a('s_lshl_b32 s14, s14, 2')
    a('s_add_u32 s17, s14, s15')
    a('v_and_b32 v1, 63, v0')
    a('v_lshrrev_b32 v2, 6, v0')
    a('v_readfirstlane_b32 s18, v2')
    a('v_and_b32 v3, 15, v1')
    a('v_lshrrev_b32 v4, 4, v1')
    a('s_lshl_b32 s19, s16, 14')
    a('s_lshl_b32 s20, s18, 11')
    a('s_add_u32 s19, s19, s20')
    a('v_lshlrev_b32 v5, 4, v1')
    a('v_add_u32 v5, s19, v5')
    def k_of(rr, out, t):
        a(f's_and_b32 s20, s18, 3')
        a(f's_lshl_b32 s20, s20, 3')
        a(f'v_add_u32 v{t}, s20, v{rr}')
        a(f'v_bfe_u32 v{out}, v{t}, 2, 2')
        a(f'v_lshlrev_b32 v{out}, 3, v{out}')
        a(f'v_and_b32 v20, 3, v{t}')
        a(f'v_add_u32 v{out}, v{out}, v20')
        a(f'v_lshrrev_b32 v20, 4, v{t}')
        a(f'v_lshl_add_u32 v{out}, v20, 2, v{out}')
        a(f's_lshr_b32 s20, s18, 2')
        a(f's_lshl_b32 s20, s20, 5')
        a(f'v_add_u32 v{out}, s20, v{out}')
    a('v_bfe_u32 v10, v1, 2, 3')
    k_of(10, 11, 12)
    a('s_movk_i32 s21, 6144')
    a('v_mul_lo_u32 v6, v11, s21')
    a('v_bfe_u32 v12, v1, 1, 1')
    a('v_lshrrev_b32 v13, 2, v10')
    a('v_xor_b32 v12, v12, v13')
    a('v_lshl_add_u32 v6, v12, 5, v6')
    a('v_and_b32 v12, 1, v1')
    a('v_lshl_add_u32 v6, v12, 4, v6')
    a('v_lshrrev_b32 v12, 5, v1')
    a('v_lshl_add_u32 v6, v12, 11, v6')
    a('s_lshl_b32 s20, s17, 6')
    a('v_add_u32 v6, s20, v6')
    a('s_lshr_b32 s22, s17, 1')
    a('s_and_b32 s23, s17, 1')
    a('s_mul_i32 s24, s22, 448')
    a('s_mul_i32 s25, s23, 192')
    a('s_add_u32 s25, s25, s24')
    a('s_lshl_b32 s26, s23, 5')
    a('s_add_u32 s26, s26, s24')
    a('s_add_u32 s26, s26, 192')
    for (dst, add) in ((7, 0), (8, 64)):
        a(f'v_add_u32 v10, {add}, v1')
        a('v_mul_u32_u24 v12, 0x124a, v10')
        a('v_lshrrev_b32 v12, 16, v12')
        a('v_mul_u32_u24 v13, 14, v12')
        a('v_sub_u32 v13, v10, v13')
        k_of(12, 11, 14)
        a('s_movk_i32 s21, 7168')
        a(f'v_mul_lo_u32 v{dst}, v11, s21')
        a(f'v_lshl_add_u32 v{dst}, v13, 4, v{dst}')
        a('v_mov_b32 v14, s25')
        a('v_mov_b32 v15, s26')
        a('v_cmp_gt_u32 vcc, 12, v13')
        a('v_cndmask_b32 v14, v15, v14, vcc')
        a(f'v_add_u32 v{dst}, v{dst}, v14')
    a('v_lshrrev_b32 v10, 5, v1')
    a('v_mul_u32_u24 v10, 3328, v10')
    a('v_bfe_u32 v11, v1, 2, 3')
    a('v_and_b32 v12, 3, v1')
    a('v_lshl_add_u32 v10, v12, 3, v10')
    a('v_lshl_add_u32 v16, v11, 6, v10')
    a('v_bfe_u32 v12, v1, 4, 1')
    a('v_lshl_add_u32 v16, v12, 5, v16')
    a('v_xor_b32 v17, 32, v16')
    a('v_mul_u32_u24 v11, 224, v11')
    a('v_add_u32 v18, v10, v11')
    a('v_add_u32 v18, 1536, v18')
    a('s_waitcnt lgkmcnt(0)')
    srd(a, 44, 4, 5, 1024 * 6144)
    srd(a, 48, 8, 9, 1024 * 7168)
    srd(a, 52, 12, 13, 4 << 20)
    srd(a, 56, 12, 13, WS_BYTES)
    srd(a, 60, 6, 7, 65536)
    srd(a, 64, 10, 11, 7168)
    a('s_mul_i32 s27, s18, 3328')
    a('s_mov_b32 s40, 0x%x' % LOG2E)
    a('s_mov_b32 s30, 0')
    a('s_mov_b32 s31, 0')
    a('s_mov_b32 s32, s27')
    a('s_mov_b32 s33, 0')
    a('s_mov_b32 s36, 0xffffffff')
    a('s_mov_b32 s37, 0')
    a('s_mov_b32 s38, 0xffffffff')
    a('s_mov_b32 s39, 0x0000ffff')
    vm = VM()
    def dma(part, s):
        if part == 0:
            a('s_mov_b32 m0, s32')
            a('buffer_load_dwordx4 v6, s[44:47], s30 offen lds')
        elif part == 1:
            a('s_add_u32 m0, s32, 1024')
            a('s_add_u32 s41, s30, 4096')
            a('s_mov_b64 exec, s[36:37]')
            a('buffer_load_dwordx4 v6, s[44:47], s41 offen lds')
            a('s_mov_b64 exec, -1')
        elif part == 2:
            a('s_add_u32 m0, s32, 1536')
            a('buffer_load_dwordx4 v7, s[48:51], s31 offen lds')
        else:
            a('s_add_u32 m0, s32, 2560')
            a('s_mov_b64 exec, s[38:39]')
            a('buffer_load_dwordx4 v8, s[48:51], s31 offen lds')
            a('s_mov_b64 exec, -1')
            a('s_add_u32 s30, s30, %d' % (64 * 6144))
            a('s_add_u32 s31, s31, %d' % (64 * 7168))
            a('s_add_u32 s32, s32, %d' % STG)
            a('s_cmp_ge_u32 s32, %d' % (NS * STG))
            a('s_cselect_b32 s41, %d, 0' % (NS * STG))
            a('s_sub_u32 s32, s32, s41')
        vm.issue(('B', s))
    def aload(t, rt):
        r = AF + ((t & 3) * 2 + rt) * 4
        a(f'buffer_load_dwordx4 v[{r}:{r+3}], v5, s[52:55], s33 offen offset:{1024*rt}')
        if rt == 1: a('s_add_u32 s33, s33, 0x20000')
        vm.issue(('A', t))
    def prologue(emit):
        def D(p, s):
            if emit: dma(p, s)
            else: vm.issue(('B', s))
        def A_(t, rt):
            if emit: aload(t, rt)
            else: vm.issue(('A', t))
        for p in range(4): D(p, 0)
        A_(0, 0); A_(0, 1); A_(1, 0); A_(1, 1)
        for p in range(4): D(p, 1)
        A_(2, 0); A_(2, 1)
        for s in range(2, PD):
            for p in range(4): D(p, s)
        if emit:
            a('s_and_b32 s41, s18, 1')
            a('s_lshl_b32 s41, s41, 10')
            a('s_add_u32 m0, s41, %d' % WPHI_LDS)
            a('s_lshl_b32 s42, s17, 11')
            a('s_add_u32 s42, s42, s41')
            a('v_lshlrev_b32 v9, 4, v1')
            a('buffer_load_dwordx4 v9, s[60:63], s42 offen lds')
        vm.issue(('W', 0))

    def rd(n, half):
        nb = n % 52
        tt, ct = nb // 13, nb % 13
        stg, kk = tt >> 1, tt & 1
        off = stg * STG + kk * 4 * RG + half * 2 * RG
        if ct < 6:
            base = 21 + (ct & 1); off += (ct >> 1) * 512
        else:
            base = 23; off += (ct - 6) * 32
        r = BF + ct * 4 + half * 2
        a(f'ds_read_b64_tr_b16 v[{r}:{r+1}], v{base} offset:{off}')

    W = {}
    def body(it, emit):
        def rec(key, tag):
            v = vm.need(tag)
            W[key] = min(W.get(key, 63), v)
        for n in range(52):
            tt, ct = n // 13, n % 13
            t = it * 4 + tt
            nxt = n + LA
            if nxt % 26 == 0:
                s = it * 2 + nxt // 26
                if not emit: rec(('B', n), ('B', s))
                else:
                    a('s_waitcnt vmcnt(%d)' % W[('B', n)])
                    a('s_barrier')
                    if nxt == 52:
                        a('s_add_u32 s35, s35, %d' % (2 * STG))
                        a('s_cmp_ge_u32 s35, %d' % (NS * STG))
                        a('s_cselect_b32 s35, 0, s35')
                        a('v_add_u32 v21, s35, v16')
                        a('v_add_u32 v22, s35, v17')
                        a('v_add_u32 v23, s35, v18')
            if ct == 0:
                if not emit: rec(('A', n), ('A', t))
                else: a('s_waitcnt vmcnt(%d) lgkmcnt(%d)' % (W[('A', n)], 2 * (LA - 1)))
            elif emit:
                a('s_waitcnt lgkmcnt(%d)' % (2 * (LA - 1)))
            if emit:
                for rt in range(2):
                    A = AF + ((t & 3) * 2 + rt) * 4
                    B = BF + ct * 4
                    D = acc(ct, rt)
                    if ct in (4, 5):
                        a(f'v_mfma_f32_16x16x32_bf16 v[{D}:{D+3}], v[{A}:{A+3}], v[{B}:{B+3}], v[{D}:{D+3}]')
                    else:
                        a(f'v_mfma_f32_16x16x32_bf16 v[{D}:{D+3}], v[{B}:{B+3}], v[{A}:{A+3}], v[{D}:{D+3}]')
                    rd(n + LA, rt)
            rel = n % 26
            if rel in (0, 5, 10, 15):
                p = (0, 5, 10, 15).index(rel)
                s = it * 2 + n // 26 + PD
                if emit: dma(p, s)
                else: vm.issue(('B', s))
            if ct in (2, 8):
                rt = 0 if ct == 2 else 1
                if emit: aload(t + 3, rt)
                else: vm.issue(('A', t + 3))
    prologue(False)
    w0 = vm.need(('B', 0))
    for it in range(8): body(it, False)
    vm.ops = []
    prologue(True)
    for r in range(ACC, ACC + 104):
        a(f'v_mov_b32 v{r}, 0')
    a('v_mov_b32 v21, v16')
    a('v_mov_b32 v22, v17')
    a('v_mov_b32 v23, v18')
    a('s_mov_b32 s35, 0')
    a('s_mov_b32 s34, 0')
    a('s_waitcnt vmcnt(%d)' % w0)
    a('s_barrier')
    for n in range(LA):
        rd(n, 0); rd(n, 1)
    a.raw('.p2align 6')
    a.label('L_g1_loop')
    body(0, True)
    a('s_add_u32 s34, s34, 1')
    a('s_cmp_lt_u32 s34, 8')
    a('s_cbranch_scc1 L_g1_loop')
    a('s_waitcnt vmcnt(0) lgkmcnt(0)')
    a('v_lshlrev_b32 v10, 3, v4')
    for i in range(6):
        a(f'buffer_load_dwordx2 v[{AF+2*i}:{AF+2*i+1}], v10, s[64:67], s25 offen offset:{32*i}')
    a(f'buffer_load_dwordx2 v[{AF+12}:{AF+13}], v10, s[64:67], s26 offen offset:192')
    a('s_barrier')
    WP = AF + 16
    a('v_lshrrev_b32 v10, 2, v1')
    a('v_lshlrev_b32 v10, 6, v10')
    a('v_and_b32 v11, 3, v1')
    a('v_lshl_add_u32 v10, v11, 3, v10')
    a('v_add_u32 v10, %d, v10' % WPHI_LDS)
    for ft in range(2):
        for half in range(2):
            a(f'ds_read_b64_tr_b16 v[{WP+ft*4+half*2}:{WP+ft*4+half*2+1}], v10 offset:{half*1024+ft*32}')
    a('s_lshl_b32 s41, s17, 18')
    a('s_lshl_b32 s42, s19, 1')
    a('s_add_u32 s41, s41, s42')
    a('s_add_u32 s41, s41, %d' % PQ_OFF)
    a('v_lshlrev_b32 v11, 4, v1')
    a('s_mul_i32 s42, s18, 6144')
    a('v_lshlrev_b32 v12, 5, v3')
    a('v_lshl_add_u32 v12, v4, 3, v12')
    a('v_add_u32 v12, s42, v12')
    a('v_add_u32 v13, s42, v11')
    T = BF
    PK = BF + 24
    P = BF + 28
    OUT = BF + 36
    a('s_waitcnt lgkmcnt(0)')
    for which in (1, 0):
        for rt in range(2):
            c0, c1 = acc(2 * which, rt), acc(2 * which + 1, rt)
            a(f'v_cvt_pk_bf16_f32 v{PK}, v{c0}, v{c0+1}')
            a(f'v_cvt_pk_bf16_f32 v{PK+1}, v{c0+2}, v{c0+3}')
            a(f'v_cvt_pk_bf16_f32 v{PK+2}, v{c1}, v{c1+1}')
            a(f'v_cvt_pk_bf16_f32 v{PK+3}, v{c1+2}, v{c1+3}')
            for ft in range(2):
                a(f'v_mfma_f32_16x16x32_bf16 v[{P+4*ft}:{P+4*ft+3}], v[{WP+4*ft}:{WP+4*ft+3}], v[{PK}:{PK+3}], 0')
            dual_softmax(a, P, T, OUT)
            if which == 0:
                a(f'buffer_store_dwordx4 v[{OUT}:{OUT+3}], v11, s[56:59], s41 offen offset:{rt*2048}')
                a(f'buffer_store_dwordx4 v[{OUT+4}:{OUT+7}], v11, s[56:59], s41 offen offset:{rt*2048+1024}')
            else:
                for ftt in range(4):
                    a(f'ds_write_b64 v12, v[{OUT+2*ftt}:{OUT+2*ftt+1}] offset:{ftt*1024+rt*512}')
        if which == 1:
            for dt in range(2):
                c0, c1 = acc(4 + dt, 0), acc(4 + dt, 1)
                a(f'v_cvt_pk_bf16_f32 v{PK}, v{c0}, v{c0+1}')
                a(f'v_cvt_pk_bf16_f32 v{PK+1}, v{c0+2}, v{c0+3}')
                a(f'v_cvt_pk_bf16_f32 v{PK+2}, v{c1}, v{c1+1}')
                a(f'v_cvt_pk_bf16_f32 v{PK+3}, v{c1+2}, v{c1+3}')
                a(f'ds_write_b128 v13, v[{PK}:{PK+3}] offset:{4096+dt*1024}')
    a('s_waitcnt vmcnt(4)')
    BI = BF
    for i in range(7):
        for h in range(2):
            a(f'v_lshlrev_b32 v{BI+4*i+2*h}, 16, v{AF+2*i+h}')
            a(f'v_and_b32 v{BI+4*i+2*h+1}, 0xffff0000, v{AF+2*i+h}')
    a('s_mul_i32 s42, s22, 7')
    a('s_add_u32 s43, s42, 6')
    a('s_mul_i32 s41, s23, 3')
    a('s_add_u32 s42, s42, s41')
    a('s_lshl_b32 s42, s42, 17')
    a('s_add_u32 s42, s42, s19')
    a('s_add_u32 s42, s42, %d' % HO_OFF)
    a('s_lshl_b32 s43, s43, 17')
    a('s_add_u32 s43, s43, s19')
    a('s_lshl_b32 s41, s23, 3')
    a('s_add_u32 s43, s43, s41')
    a('s_add_u32 s43, s43, %d' % HO_OFF)
    HT = BF + 28
    for i in range(7):
        for rt in range(2):
            c = acc(6 + i, rt)
            for r in range(4):
                a(f'v_add_f32 v{c+r}, v{c+r}, v{BI+4*i+r}')
            for r in range(4):
                a(f'v_max_f32 v{c+r}, 0, v{c+r}')
            for r in range(4):
                a(f'v_mul_f32 v{c+r}, v{c+r}, v{c+r}')
            o = HT + rt * 4 + (i & 1) * 2 + ((i >> 1) & 1) * 8
            a(f'v_cvt_pk_bf16_f32 v{o}, v{c}, v{c+1}')
            a(f'v_cvt_pk_bf16_f32 v{o+1}, v{c+2}, v{c+3}')
            if i & 1:
                a(f'buffer_store_dwordx4 v[{o-2}:{o+1}], v11, s[56:59], s42 offen offset:{rt*1024}')
            elif i == 6:
                a(f'buffer_store_dwordx2 v[{o}:{o+1}], v11, s[56:59], s43 offen offset:{rt*1024}')
        if i & 1:
            a('s_add_u32 s42, s42, 0x20000')
    a('s_waitcnt lgkmcnt(0)')
    a('s_barrier')
    a('s_lshr_b32 s41, s18, 1')
    a('s_and_b32 s42, s18, 1')
    a('s_lshl_b32 s43, s41, 10')
    a('v_lshlrev_b32 v12, 3, v1')
    a('v_add_u32 v12, s43, v12')
    a('s_lshl_b32 s43, s42, 10')
    a('v_add_u32 v13, s43, v11')
    KA = ACC
    KB = ACC + 32
    KD = ACC + 64; KZ = ACC + 68; ONE = ACC + 72
    for c in range(8):
        a(f'ds_read_b64_tr_b16 v[{KA+4*c}:{KA+4*c+1}], v12 offset:{c*6144}')
        a(f'ds_read_b64_tr_b16 v[{KA+4*c+2}:{KA+4*c+3}], v12 offset:{c*6144+512}')
        a(f'ds_read_b128 v[{KB+4*c}:{KB+4*c+3}], v13 offset:{c*6144+4096}')
        if c == 3: a('s_waitcnt lgkmcnt(0)')
    for r in range(4):
        a(f'v_mov_b32 v{ONE+r}, 0x3f803f80')
    a('s_waitcnt lgkmcnt(0)')
    for c in range(8):
        cc = '0' if c == 0 else f'v[{KD}:{KD+3}]'
        cz = '0' if c == 0 else f'v[{KZ}:{KZ+3}]'
        a(f'v_mfma_f32_16x16x32_bf16 v[{KD}:{KD+3}], v[{KA+4*c}:{KA+4*c+3}], v[{KB+4*c}:{KB+4*c+3}], {cc}')
        a(f'v_mfma_f32_16x16x32_bf16 v[{KZ}:{KZ+3}], v[{KA+4*c}:{KA+4*c+3}], v[{ONE}:{ONE+3}], {cz}')
    a('s_lshl_b32 s43, s17, 3')
    a('s_add_u32 s43, s43, s16')
    a('s_mul_i32 s43, s43, %d' % KV_STRIDE)
    a('s_add_u32 s43, s43, %d' % KV_OFF)
    a('s_lshl_b32 s42, s18, 10')
    a('s_add_u32 s42, s42, s43')
    a('s_lshl_b32 s41, s41, 6')
    a('s_add_u32 s41, s41, s43')
    a('s_add_u32 s41, s41, 8192')
    a('v_lshlrev_b32 v12, 4, v4')
    a(f'buffer_store_dwordx4 v[{KD}:{KD+3}], v11, s[56:59], s42 offen')
    a('v_cmp_eq_u32 vcc, 0, v3')
    a('s_and_saveexec_b64 s[68:69], vcc')
    a(f'buffer_store_dwordx4 v[{KZ}:{KZ+3}], v12, s[56:59], s41 offen')
    a.label('L_g1_done')
    a('s_endpgm')
    return name, '(256,1,1)', '(512,1,1)', LDS, kdesc(name, 256, 96)

def gen_o(a):
    name = 'o_kernel'
    kstart(a, name)
    a('s_cmp_ge_u32 s2, 256')
    a('s_cbranch_scc1 L_o_done')
    a('s_load_dwordx2 s[12:13], s[0:1], 88')
    a('s_and_b32 s14, s2, 7')
    a('s_lshr_b32 s15, s2, 3')
    a('s_and_b32 s16, s15, 7')
    a('s_lshr_b32 s15, s15, 3')
    a('s_lshl_b32 s14, s14, 2')
    a('s_add_u32 s17, s14, s15')
    a('v_and_b32 v1, 63, v0')
    a('v_lshrrev_b32 v2, 6, v0')
    a('v_readfirstlane_b32 s18, v2')
    a('v_lshrrev_b32 v4, 4, v1')
    a('v_lshlrev_b32 v11, 4, v1')
    a('v_lshlrev_b32 v12, 4, v4')
    a('s_lshl_b32 s19, s16, 14')
    a('s_lshl_b32 s20, s18, 11')
    a('s_add_u32 s19, s19, s20')
    a('s_waitcnt lgkmcnt(0)')
    srd(a, 56, 12, 13, WS_BYTES)
    a('s_mul_i32 s43, s17, %d' % (8 * KV_STRIDE))
    a('s_add_u32 s43, s43, %d' % KV_OFF)
    a('s_lshl_b32 s42, s18, 10')
    a('s_add_u32 s42, s42, s43')
    a('s_lshr_b32 s41, s18, 1')
    a('s_lshl_b32 s44, s41, 6')
    a('s_add_u32 s44, s44, s43')
    a('s_add_u32 s44, s44, 8192')
    for p in range(8):
        a(f'buffer_load_dwordx4 v[{16+4*p}:{19+4*p}], v11, s[56:59], s42 offen')
        a(f'buffer_load_dwordx4 v[{48+4*p}:{51+4*p}], v12, s[56:59], s44 offen')
        a('s_add_u32 s42, s42, %d' % KV_STRIDE)
        a('s_add_u32 s44, s44, %d' % KV_STRIDE)
    a('s_lshl_b32 s45, s17, 18')
    a('s_lshl_b32 s46, s19, 1')
    a('s_add_u32 s45, s45, s46')
    a('s_add_u32 s45, s45, %d' % PQ_OFF)
    for j in range(4):
        a(f'buffer_load_dwordx4 v[{80+4*j}:{83+4*j}], v11, s[56:59], s45 offen offset:{1024*j}')
    a('s_waitcnt vmcnt(4)')
    for p in range(1, 8):
        for r in range(4):
            a(f'v_add_f32 v{16+r}, v{16+r}, v{16+4*p+r}')
            a(f'v_add_f32 v{48+r}, v{48+r}, v{48+4*p+r}')
    a('v_cvt_pk_bf16_f32 v20, v16, v17')
    a('v_cvt_pk_bf16_f32 v21, v18, v19')
    a('v_cvt_pk_bf16_f32 v22, v48, v49')
    a('v_cvt_pk_bf16_f32 v23, v50, v51')
    a('s_lshr_b32 s42, s41, 1')
    a('s_mul_i32 s42, s42, 3072')
    a('s_and_b32 s44, s41, 1')
    a('s_lshl_b32 s44, s44, 3')
    a('s_add_u32 s42, s42, s44')
    a('v_add_u32 v13, s42, v11')
    a('s_and_b32 s44, s18, 1')
    a('s_lshl_b32 s44, s44, 10')
    a('v_add_u32 v14, s44, v13')
    a('ds_write_b64 v14, v[20:21]')
    a('ds_write_b64 v13, v[22:23] offset:2048')
    a('s_waitcnt lgkmcnt(0)')
    a('s_barrier')
    for f in range(6):
        a(f'ds_read_b128 v[{16+4*f}:{19+4*f}], v11 offset:{1024*f}')
    a('s_add_u32 s42, s17, 112')
    a('s_lshl_b32 s42, s42, 17')
    a('s_add_u32 s42, s42, s19')
    a('s_add_u32 s42, s42, %d' % HO_OFF)
    a('s_waitcnt vmcnt(0) lgkmcnt(0)')
    for rt in range(2):
        D = 48 + rt * 12
        for dt in range(3):
            a(f'v_mfma_f32_16x16x32_bf16 v[{D+4*dt}:{D+4*dt+3}], v[{16+4*dt}:{19+4*dt}], v[{80+8*rt}:{83+8*rt}], 0')
        for dt in range(3):
            a(f'v_mfma_f32_16x16x32_bf16 v[{D+4*dt}:{D+4*dt+3}], v[{28+4*dt}:{31+4*dt}], v[{84+8*rt}:{87+8*rt}], v[{D+4*dt}:{D+4*dt+3}]')
    for rt in range(2):
        D = 48 + rt * 12
        round_bf16(a, D + 8)
        a(f'v_add_f32 v{D+8}, 0x358637bd, v{D+8}')
        round_bf16(a, D + 8)
        a(f'v_rcp_f32 v{D+8}, v{D+8}')
        for j in range(0, 8, 2):
            a(f'v_cvt_pk_bf16_f32 v{D+9}, v{D+j}, v{D+j+1}')
            a(f'v_lshlrev_b32 v{D+j}, 16, v{D+9}')
            a(f'v_and_b32 v{D+j+1}, 0xffff0000, v{D+9}')
            a(f'v_mul_f32 v{D+j}, v{D+j}, v{D+8}')
            a(f'v_mul_f32 v{D+j+1}, v{D+j+1}, v{D+8}')
            a(f'v_cvt_pk_bf16_f32 v{72+rt*4+j//2}, v{D+j}, v{D+j+1}')
        a(f'buffer_store_dwordx4 v[{72+rt*4}:{75+rt*4}], v11, s[56:59], s42 offen offset:{rt*1024}')
    a.label('L_o_done')
    a('s_endpgm')
    return name, '(256,1,1)', '(512,1,1)', 6144, kdesc(name, 96, 64)

def gen_g2(a, NS=8, LA=4):
    name = 'g2_kernel'
    STG = 16384
    PD = NS - 2
    LDS = NS * STG
    ACC = 24; BF = 56; AF = 88
    AD = 7
    def acc(ct, rt): return ACC + (ct * 2 + rt) * 4
    kstart(a, name)
    a('s_cmp_ge_u32 s2, 256')
    a('s_cbranch_scc1 L_g2_done')
    a('s_load_dwordx2 s[4:5], s[0:1], 0')
    a('s_load_dwordx2 s[6:7], s[0:1], 24')
    a('s_load_dwordx4 s[8:11], s[0:1], 56')
    a('s_load_dwordx2 s[12:13], s[0:1], 72')
    a('s_load_dwordx2 s[14:15], s[0:1], 88')
    a('s_and_b32 s20, s2, 7')
    a('s_lshr_b32 s21, s2, 3')
    a('s_lshr_b32 s16, s20, 1')
    a('s_lshl_b32 s16, s16, 2')
    a('s_and_b32 s22, s21, 3')
    a('s_add_u32 s16, s16, s22')
    a('s_and_b32 s17, s20, 1')
    a('s_lshl_b32 s17, s17, 3')
    a('s_lshr_b32 s22, s21, 2')
    a('s_add_u32 s17, s17, s22')
    a('v_and_b32 v1, 63, v0')
    a('v_lshrrev_b32 v2, 6, v0')
    a('v_readfirstlane_b32 s18, v2')
    a('v_and_b32 v3, 15, v1')
    a('v_lshrrev_b32 v4, 4, v1')
    a('s_lshl_b32 s19, s16, 13')
    a('s_lshl_b32 s20, s18, 11')
    a('s_add_u32 s19, s19, s20')
    a('v_lshlrev_b32 v5, 4, v1')
    a('v_add_u32 v5, s19, v5')
    a('v_lshrrev_b32 v10, 3, v1')
    a('s_lshl_b32 s20, s18, 5')
    a('v_add_u32 v10, s20, v10')
    a('v_lshlrev_b32 v6, 11, v10')
    a('v_bfe_u32 v11, v1, 1, 2')
    a('v_xor_b32 v11, v11, v4')
    a('v_lshl_add_u32 v6, v11, 5, v6')
    a('v_and_b32 v11, 1, v1')
    a('v_lshl_add_u32 v6, v11, 4, v6')
    a('s_lshl_b32 s20, s17, 7')
    a('v_add_u32 v6, s20, v6')
    for j in range(1, 4):
        a(f'v_add_u32 v{6+j}, {j*8*2048}, v6')
    a('v_lshrrev_b32 v10, 2, v1')
    a('v_lshlrev_b32 v11, 7, v10')
    a('v_and_b32 v12, 3, v1')
    a('v_lshl_add_u32 v11, v12, 3, v11')
    a('v_bfe_u32 v12, v1, 3, 2')
    a('v_lshl_add_u32 v12, v12, 5, v11')
    for ct in range(4):
        a(f'v_xor_b32 v{12+ct}, {ct*32}, v12') if ct else None
    a('s_waitcnt lgkmcnt(0)')
    srd(a, 44, 8, 9, 3584 * 2048)
    srd_off(a, 52, 14, 15, HO_OFF, HO_BYTES)
    srd(a, 56, 4, 5, 4 << 20)
    srd(a, 60, 12, 13, 4 << 20)
    srd(a, 64, 10, 11, 2048)
    a('s_lshl_b32 s27, s18, 12')
    a('s_mov_b32 s30, 0')
    a('s_mov_b32 s31, 0')
    a('s_mov_b32 s32, s27')
    a('s_mov_b32 s33, 0')
    vm = VM()
    def dma(p, s):
        if p == 0: a('s_mov_b32 m0, s32')
        else: a(f's_add_u32 m0, s32, {1024*p}')
        a(f'buffer_load_dwordx4 v{6+p}, s[44:47], s30 offen lds')
        if p == 3:
            a('s_add_u32 s30, s30, 0x40000')
            a('s_add_u32 s32, s32, %d' % STG)
            a('s_cmp_ge_u32 s32, %d' % (NS * STG))
            a('s_cselect_b32 s41, %d, 0' % (NS * STG))
            a('s_sub_u32 s32, s32, s41')
            a('s_add_u32 s31, s31, 1')
            a('s_cmp_eq_u32 s31, 28')
            a('s_cselect_b32 s44, s6, s44')
            a('s_cselect_b32 s45, s7, s45')
            a('s_cselect_b32 s46, 0x200000, s46')
            a('s_cselect_b32 s30, 0, s30')
        vm.issue(('B', s))
    def aload(t, rt):
        r = AF + ((t & 7) * 2 + rt) * 4
        a(f'buffer_load_dwordx4 v[{r}:{r+3}], v5, s[52:55], s33 offen offset:{1024*rt}')
        if rt == 1: a('s_add_u32 s33, s33, 0x20000')
        vm.issue(('A', t))
    def prologue(emit):
        def D(p, s):
            if emit: dma(p, s)
            else: vm.issue(('B', s))
        def A_(t, rt):
            if emit: aload(t, rt)
            else: vm.issue(('A', t))
        for p in range(4): D(p, 0)
        for t in range(4): A_(t, 0); A_(t, 1)
        for p in range(4): D(p, 1)
        for t in range(4, AD): A_(t, 0); A_(t, 1)
        for s in range(2, PD):
            for p in range(4): D(p, s)
    NF = 32
    def rd(n, half):
        nb = n % NF
        tt, ct = nb // 4, nb % 4
        off = tt * 4096 + half * 2048
        r = BF + (n % 8) * 4 + half * 2
        a(f'ds_read_b64_tr_b16 v[{r}:{r+1}], v{16+ct} offset:{off}')
    W = {}
    def body(it, emit):
        def rec(key, tag):
            W[key] = min(W.get(key, 63), vm.need(tag))
        for n in range(NF):
            tt, ct = n // 4, n % 4
            t = it * 8 + tt
            nxt = n + LA
            if nxt % 16 == 0:
                s = it * 2 + nxt // 16
                if not emit: rec(('B', n), ('B', s))
                else:
                    a('s_waitcnt vmcnt(%d)' % W[('B', n)])
                    a('s_barrier')
                    if nxt == NF:
                        a('s_add_u32 s35, s35, %d' % (2 * STG))
                        a('s_cmp_ge_u32 s35, %d' % (NS * STG))
                        a('s_cselect_b32 s35, 0, s35')
                        for c in range(4):
                            a(f'v_add_u32 v{16+c}, s35, v{12+c}')
            if ct == 0:
                if not emit: rec(('A', n), ('A', t))
                else: a('s_waitcnt vmcnt(%d) lgkmcnt(%d)' % (W[('A', n)], 2 * (LA - 1)))
            elif emit:
                a('s_waitcnt lgkmcnt(%d)' % (2 * (LA - 1)))
            if emit:
                for rt in range(2):
                    A = AF + ((t & 7) * 2 + rt) * 4
                    B = BF + (n % 8) * 4
                    D = acc(ct, rt)
                    a(f'v_mfma_f32_16x16x32_bf16 v[{D}:{D+3}], v[{B}:{B+3}], v[{A}:{A+3}], v[{D}:{D+3}]')
                    rd(n + LA, rt)
            rel = n % 16
            if rel in (0, 3, 6, 9):
                p = (0, 3, 6, 9).index(rel)
                s = it * 2 + n // 16 + PD
                if emit: dma(p, s)
                else: vm.issue(('B', s))
            if ct in (1, 2):
                rt = ct - 1
                if emit: aload(t + AD, rt)
                else: vm.issue(('A', t + AD))
    prologue(False)
    w0 = vm.need(('B', 0))
    for it in range(18): body(it, False)
    vm.ops = []
    prologue(True)
    for r in range(ACC, ACC + 32):
        a(f'v_mov_b32 v{r}, 0')
    for c in range(4):
        a(f'v_mov_b32 v{16+c}, v{12+c}')
    a('s_mov_b32 s35, 0')
    a('s_mov_b32 s34, 0')
    a('s_waitcnt vmcnt(%d)' % w0)
    a('s_barrier')
    for n in range(LA):
        rd(n, 0); rd(n, 1)
    a.raw('.p2align 6')
    a.label('L_g2_loop')
    body(0, True)
    a('s_add_u32 s34, s34, 1')
    a('s_cmp_lt_u32 s34, 18')
    a('s_cbranch_scc1 L_g2_loop')
    a('s_waitcnt vmcnt(0) lgkmcnt(0)')
    a('s_lshl_b32 s41, s19, 5')
    a('s_lshl_b32 s42, s17, 7')
    a('s_add_u32 s41, s41, s42')
    a('v_lshlrev_b32 v10, 11, v3')
    a('v_lshl_add_u32 v10, v4, 3, v10')
    a('v_add_u32 v10, s41, v10')
    a('v_add_u32 v11, 0x8000, v10')
    a('v_lshlrev_b32 v20, 3, v4')
    X = AF; Bb = AF + 16
    for rt in range(2):
        for ct in range(4):
            r = X + (rt * 4 + ct) * 2
            a(f'buffer_load_dwordx2 v[{r}:{r+1}], v{10+rt}, s[56:59], 0 offen offset:{ct*32}')
    for ct in range(4):
        a(f'buffer_load_dwordx2 v[{Bb+2*ct}:{Bb+2*ct+1}], v20, s[64:67], s42 offen offset:{ct*32}')
    a('s_waitcnt vmcnt(0)')
    T = AF + 32
    for ct in range(4):
        for h in range(2):
            a(f'v_lshlrev_b32 v{T+4*ct+2*h}, 16, v{Bb+2*ct+h}')
            a(f'v_and_b32 v{T+4*ct+2*h+1}, 0xffff0000, v{Bb+2*ct+h}')
    for rt in range(2):
        for ct in range(4):
            c = acc(ct, rt); r = X + (rt * 4 + ct) * 2
            for h in range(2):
                a(f'v_lshlrev_b32 v21, 16, v{r+h}')
                a(f'v_and_b32 v22, 0xffff0000, v{r+h}')
                a(f'v_add_f32 v{c+2*h}, v{c+2*h}, v{T+4*ct+2*h}')
                a(f'v_add_f32 v{c+2*h+1}, v{c+2*h+1}, v{T+4*ct+2*h+1}')
                a(f'v_add_f32 v{c+2*h}, v{c+2*h}, v21')
                a(f'v_add_f32 v{c+2*h+1}, v{c+2*h+1}, v22')
                a(f'v_cvt_pk_bf16_f32 v{r+h}, v{c+2*h}, v{c+2*h+1}')
            a(f'buffer_store_dwordx2 v[{r}:{r+1}], v{10+rt}, s[60:63], 0 offen offset:{ct*32}')
    a.label('L_g2_done')
    a('s_endpgm')
    return name, '(256,1,1)', '(256,1,1)', LDS, kdesc(name, 160, 96)

def build(path, kernels):
    a = Asm()
    infos = [k(a) for k in kernels]
    out = HEADER
    for (n, g, b, lds, _) in infos:
        out += f'; @launch kernel={n} grid={g} block={b} lds={lds}\n'
    out += '.amdgcn_target "amdgcn-amd-amdhsa--gfx950"\n'
    out += a.text()
    seen = set()
    for (n, g, b, lds, d) in infos:
        if n not in seen: out += d
        seen.add(n)
    open(path, 'w').write(out)
    print('wrote', path, 'nops', a.nops, 'lines', len(a.out))

if __name__ == '__main__':
    path = sys.argv[1] if len(sys.argv) > 1 else 'cdna_kernels/%s.s' % NAME
    build(path, [gen_ln, gen_g1, gen_o, gen_g2])
```

```python
import sys
from asmlib import *

NAME = 'parallel_sum__linear_kernel_hedgehog__dense_activation_squared_relu__prompt'
XN_OFF = 0
HO_OFF = 4 << 20
HO_BYTES = 144 * 128 * 1024
PQ_OFF = 24 << 20
KV_OFF = 32 << 20
KV_STRIDE = 9216
WS_BYTES = 40 << 20
LOG2E = 0x3fb8aa3b

HEADER = open('cdna_kernels/%s.s.ref' % NAME).read().split('; Override launch')[0]

def srd(a, d, base_lo, base_hi, nrec):
    a(f's_mov_b32 s{d}, s{base_lo}')
    a(f's_mov_b32 s{d+1}, s{base_hi}')
    a(f's_mov_b32 s{d+2}, {nrec}')
    a(f's_mov_b32 s{d+3}, 0x00020000')

def srd_off(a, d, base_lo, base_hi, off, nrec):
    a(f's_add_u32 s{d}, s{base_lo}, {off}')
    a(f's_addc_u32 s{d+1}, s{base_hi}, 0')
    a(f's_mov_b32 s{d+2}, {nrec}')
    a(f's_mov_b32 s{d+3}, 0x00020000')

def kstart(a, name):
    a.raw('.text')
    a.raw(f'.globl {name}')
    a.raw('.p2align 8')
    a.raw(f'.type {name},@function')
    a.label(name)
    a.hist = []

def kdesc(name, vgpr, sgpr=96, accum=None):
    if accum is None: accum = (vgpr + 3) // 4 * 4
    return f'''.section .rodata,"a"
.p2align 6
.amdhsa_kernel {name}
  .amdhsa_next_free_vgpr {vgpr}
  .amdhsa_next_free_sgpr {sgpr}
  .amdhsa_accum_offset {accum}
  .amdhsa_group_segment_fixed_size 0
  .amdhsa_kernarg_size 96
  .amdhsa_user_sgpr_count 2
  .amdhsa_user_sgpr_kernarg_segment_ptr 1
  .amdhsa_system_sgpr_workgroup_id_x 1
.end_amdhsa_kernel
'''

def xreduce(a, op, v, t):
    a(f'v_mov_b32 v{t}, v{v}')
    a(f'v_permlane32_swap_b32 v{v}, v{t}')
    a(f'{op} v{v}, v{v}, v{t}')
    a(f'v_mov_b32 v{t}, v{v}')
    a(f'v_permlane16_swap_b32 v{v}, v{t}')
    a(f'{op} v{v}, v{v}, v{t}')

def round_bf16(a, v, t=None):
    a(f'v_cvt_pk_bf16_f32 v{v}, v{v}, v{v}')
    a(f'v_and_b32 v{v}, 0xffff0000, v{v}')

STAMP = False
STAMP_OFF = 48 << 20
def stamp(a, idx):
    if not STAMP: return
    a(f's_memtime s[{70+2*idx}:{71+2*idx}]')
def stamp_final(a, n, kidx, wslo, nwaves):
    if not STAMP: return
    a('s_mov_b64 exec, -1')
    a('s_memrealtime s[90:91]')
    a('s_waitcnt vmcnt(0) lgkmcnt(0)')
    a(f's_memtime s[{70+2*n}:{71+2*n}]')
    a('s_waitcnt lgkmcnt(0)')
    a(f's_add_u32 s92, s{wslo}, {STAMP_OFF + kidx * (1 << 20)}')
    a(f's_addc_u32 s93, s{wslo+1}, 0')
    a('s_mov_b32 s94, 0x100000')
    a('s_mov_b32 s95, 0x00020000')
    a(f's_mul_i32 s89, s2, {nwaves}')
    a('s_add_u32 s89, s89, s18')
    a('s_lshl_b32 s89, s89, 6')
    a('v_mov_b32 v0, 0')
    for i in range(n + 1):
        a(f'v_mov_b32 v1, s{70+2*i}')
        a(f'buffer_store_dword v1, v0, s[92:95], s89 offen offset:{4*i}')
    a('v_mov_b32 v1, s88')
    a(f'buffer_store_dword v1, v0, s[92:95], s89 offen offset:56')
    a('v_mov_b32 v1, s90')
    a(f'buffer_store_dword v1, v0, s[92:95], s89 offen offset:60')
def stamp_start(a):
    if not STAMP: return
    a('s_memrealtime s[88:89]')
    a('s_memtime s[70:71]')

def gen_ln(a):
    name = 'ln_kernel'
    kstart(a, name)
    a('s_cmp_ge_u32 s2, 128')
    a('s_cbranch_scc1 L_ln_done')
    a('s_load_dwordx2 s[4:5], s[0:1], 0')
    a('s_load_dwordx2 s[6:7], s[0:1], 88')
    a('v_and_b32 v1, 63, v0')
    a('v_lshrrev_b32 v2, 6, v0')
    a('v_and_b32 v3, 15, v1')
    a('v_lshrrev_b32 v4, 4, v1')
    a('s_lshl_b32 s3, s2, 15')
    a('v_lshlrev_b32 v5, 11, v3')
    a('v_lshl_add_u32 v5, v2, 8, v5')
    a('v_lshl_add_u32 v5, v4, 4, v5')
    a('v_add_u32 v5, s3, v5')
    a('s_waitcnt lgkmcnt(0)')
    srd(a, 8, 4, 5, 4 << 20)
    srd(a, 12, 6, 7, 4 << 20)
    for c in range(4):
        a(f'buffer_load_dwordx4 v[{8+4*c}:{11+4*c}], v5, s[8:11], 0 offen offset:{64*c}')
    a('v_lshlrev_b32 v6, 19, v2')
    a('v_lshl_add_u32 v6, v1, 4, v6')
    a('s_lshl_b32 s3, s2, 10')
    a('v_add_u32 v6, s3, v6')
    a('v_lshlrev_b32 v7, 5, v3')
    a('v_lshl_add_u32 v60, v2, 2, v7')
    a('s_waitcnt vmcnt(0)')
    F = 24
    for d in range(16):
        a(f'v_lshlrev_b32 v{F+2*d}, 16, v{8+d}')
        a(f'v_and_b32 v{F+2*d+1}, 0xffff0000, v{8+d}')
    a(f'v_add_f32 v56, v{F}, v{F+1}')
    a(f'v_add_f32 v57, v{F+2}, v{F+3}')
    for e in range(4, 32, 2):
        a(f'v_add_f32 v56, v56, v{F+e}')
        a(f'v_add_f32 v57, v57, v{F+e+1}')
    a('v_add_f32 v56, v56, v57')
    xreduce(a, 'v_add_f32', 56, 57)
    a('ds_write_b32 v60, v56')
    a('s_waitcnt lgkmcnt(0)')
    a('s_barrier')
    a('ds_read_b128 v[8:11], v7')
    a('ds_read_b128 v[12:15], v7 offset:16')
    a('s_waitcnt lgkmcnt(0)')
    for e in range(9, 16):
        a(f'v_add_f32 v8, v8, v{e}')
    a('v_mul_f32 v58, 0x3a800000, v8')
    a(f'v_sub_f32 v8, v{F}, v58')
    a(f'v_mul_f32 v56, v8, v8')
    a(f'v_sub_f32 v9, v{F+1}, v58')
    a(f'v_mul_f32 v57, v9, v9')
    for e in range(2, 32, 2):
        a(f'v_sub_f32 v8, v{F+e}, v58')
        a(f'v_sub_f32 v9, v{F+e+1}, v58')
        a(f'v_fmac_f32 v56, v8, v8')
        a(f'v_fmac_f32 v57, v9, v9')
    a('v_add_f32 v56, v56, v57')
    xreduce(a, 'v_add_f32', 56, 57)
    a('ds_write_b32 v60, v56 offset:512')
    a('s_waitcnt lgkmcnt(0)')
    a('s_barrier')
    a('ds_read_b128 v[8:11], v7 offset:512')
    a('ds_read_b128 v[12:15], v7 offset:528')
    a('s_waitcnt lgkmcnt(0)')
    for e in range(9, 16):
        a(f'v_add_f32 v8, v8, v{e}')
    a('v_mul_f32 v59, 0x3a800000, v8')
    round_bf16(a, 58)
    round_bf16(a, 59)
    a('v_add_f32 v59, 0x3727c5ac, v59')
    round_bf16(a, 59)
    a('v_sqrt_f32 v59, v59')
    round_bf16(a, 59)
    a('v_rcp_f32 v59, v59')
    for d in range(16):
        a(f'v_sub_f32 v{F+2*d}, v{F+2*d}, v58')
        a(f'v_sub_f32 v{F+2*d+1}, v{F+2*d+1}, v58')
        a(f'v_cvt_pk_bf16_f32 v{8+d}, v{F+2*d}, v{F+2*d+1}')
        a(f'v_lshlrev_b32 v{F+2*d}, 16, v{8+d}')
        a(f'v_and_b32 v{F+2*d+1}, 0xffff0000, v{8+d}')
        a(f'v_mul_f32 v{F+2*d}, v{F+2*d}, v59')
        a(f'v_mul_f32 v{F+2*d+1}, v{F+2*d+1}, v59')
        a(f'v_cvt_pk_bf16_f32 v{8+d}, v{F+2*d}, v{F+2*d+1}')
    a('s_mov_b32 s16, 0x20000')
    a('s_mov_b32 s17, 0x40000')
    a('s_mov_b32 s18, 0x60000')
    a('buffer_store_dwordx4 v[8:11], v6, s[12:15], 0 offen')
    a('buffer_store_dwordx4 v[12:15], v6, s[12:15], s16 offen')
    a('buffer_store_dwordx4 v[16:19], v6, s[12:15], s17 offen')
    a('buffer_store_dwordx4 v[20:23], v6, s[12:15], s18 offen')
    a.label('L_ln_done')
    a('s_endpgm')
    return name, '(128,1,1)', '(512,1,1)', 1024, kdesc(name, 64, 32)

class VM:
    def __init__(self): self.ops = []
    def issue(self, tag): self.ops.append(tag)
    def need(self, tag):
        for i in range(len(self.ops) - 1, -1, -1):
            if self.ops[i] == tag: return len(self.ops) - 1 - i
        raise KeyError(tag)

def dual_softmax(a, P, T, OUT):
    mx, mn, t0, t1 = T, T + 1, T + 2, T + 3
    EP, EM = T + 4, T + 12
    for j in range(0, 8, 2):
        a(f'v_cvt_pk_bf16_f32 v{t0}, v{P+j}, v{P+j+1}')
        a(f'v_lshlrev_b32 v{P+j}, 16, v{t0}')
        a(f'v_and_b32 v{P+j+1}, 0xffff0000, v{t0}')
    a(f'v_max3_f32 v{mx}, v{P}, v{P+1}, v{P+2}')
    a(f'v_min3_f32 v{mn}, v{P}, v{P+1}, v{P+2}')
    a(f'v_max3_f32 v{mx}, v{mx}, v{P+3}, v{P+4}')
    a(f'v_min3_f32 v{mn}, v{mn}, v{P+3}, v{P+4}')
    a(f'v_max3_f32 v{mx}, v{mx}, v{P+5}, v{P+6}')
    a(f'v_min3_f32 v{mn}, v{mn}, v{P+5}, v{P+6}')
    a(f'v_max_f32 v{mx}, v{mx}, v{P+7}')
    a(f'v_min_f32 v{mn}, v{mn}, v{P+7}')
    xreduce(a, 'v_max_f32', mx, t0)
    xreduce(a, 'v_min_f32', mn, t1)
    for j in range(8):
        a(f'v_sub_f32 v{EP+j}, v{P+j}, v{mx}')
        a(f'v_sub_f32 v{EM+j}, v{mn}, v{P+j}')
    for j in range(8):
        a(f'v_mul_f32 v{EP+j}, s40, v{EP+j}')
        a(f'v_mul_f32 v{EM+j}, s40, v{EM+j}')
    for j in range(8):
        a(f'v_exp_f32 v{EP+j}, v{EP+j}')
        a(f'v_exp_f32 v{EM+j}, v{EM+j}')
    a(f'v_add_f32 v{mx}, v{EP}, v{EP+1}')
    a(f'v_add_f32 v{mn}, v{EM}, v{EM+1}')
    for j in range(2, 8):
        a(f'v_add_f32 v{mx}, v{mx}, v{EP+j}')
        a(f'v_add_f32 v{mn}, v{mn}, v{EM+j}')
    xreduce(a, 'v_add_f32', mx, t0)
    xreduce(a, 'v_add_f32', mn, t1)
    a(f'v_rcp_f32 v{mx}, v{mx}')
    a(f'v_rcp_f32 v{mn}, v{mn}')
    for j in range(8):
        a(f'v_mul_f32 v{EP+j}, v{EP+j}, v{mx}')
        a(f'v_mul_f32 v{EM+j}, v{EM+j}, v{mn}')
    for j in range(4):
        a(f'v_cvt_pk_bf16_f32 v{OUT+j}, v{EP+2*j}, v{EP+2*j+1}')
        a(f'v_cvt_pk_bf16_f32 v{OUT+4+j}, v{EM+2*j}, v{EM+2*j+1}')

def gen_g1(a, NS=6, LA=6, cfg=None):
    name = 'g1_kernel'
    STG = 26624
    RG = 3328
    PD = NS - 2
    WPHI_LDS = NS * STG
    LDS = NS * STG + 2048
    ACC = 24; BF = 128; AF = 180
    def acc(ct, rt): return ACC + (ct * 2 + rt) * 4
    kstart(a, name)
    a('s_cmp_ge_u32 s2, 256')
    a('s_cbranch_scc1 L_g1_done')
    stamp_start(a)
    a('s_load_dwordx4 s[4:7], s[0:1], 8')
    a('s_load_dwordx4 s[8:11], s[0:1], 40')
    a('s_load_dwordx2 s[12:13], s[0:1], 88')
    a('s_and_b32 s14, s2, 7')
    a('s_lshr_b32 s15, s2, 3')
    a('s_and_b32 s16, s15, 7')
    a('s_lshr_b32 s15, s15, 3')
    a('s_lshl_b32 s14, s14, 2')
    a('s_add_u32 s17, s14, s15')
    a('v_and_b32 v1, 63, v0')
    a('v_lshrrev_b32 v2, 6, v0')
    a('v_readfirstlane_b32 s18, v2')
    a('v_and_b32 v3, 15, v1')
    a('v_lshrrev_b32 v4, 4, v1')
    a('s_lshl_b32 s19, s16, 14')
    a('s_lshl_b32 s20, s18, 11')
    a('s_add_u32 s19, s19, s20')
    a('v_lshlrev_b32 v5, 4, v1')
    a('v_add_u32 v5, s19, v5')
    def k_of(rr, out, t):
        a(f's_and_b32 s20, s18, 3')
        a(f's_lshl_b32 s20, s20, 3')
        a(f'v_add_u32 v{t}, s20, v{rr}')
        a(f'v_bfe_u32 v{out}, v{t}, 2, 2')
        a(f'v_lshlrev_b32 v{out}, 3, v{out}')
        a(f'v_and_b32 v20, 3, v{t}')
        a(f'v_add_u32 v{out}, v{out}, v20')
        a(f'v_lshrrev_b32 v20, 4, v{t}')
        a(f'v_lshl_add_u32 v{out}, v20, 2, v{out}')
        a(f's_lshr_b32 s20, s18, 2')
        a(f's_lshl_b32 s20, s20, 5')
        a(f'v_add_u32 v{out}, s20, v{out}')
    a('v_bfe_u32 v10, v1, 2, 3')
    k_of(10, 11, 12)
    a('s_movk_i32 s21, 6144')
    a('v_mul_lo_u32 v6, v11, s21')
    a('v_bfe_u32 v12, v1, 1, 1')
    a('v_lshrrev_b32 v13, 2, v10')
    a('v_xor_b32 v12, v12, v13')
    a('v_lshl_add_u32 v6, v12, 5, v6')
    a('v_and_b32 v12, 1, v1')
    a('v_lshl_add_u32 v6, v12, 4, v6')
    a('v_lshrrev_b32 v12, 5, v1')
    a('v_lshl_add_u32 v6, v12, 11, v6')
    a('s_lshl_b32 s20, s17, 6')
    a('v_add_u32 v6, s20, v6')
    a('s_lshr_b32 s22, s17, 1')
    a('s_and_b32 s23, s17, 1')
    a('s_mul_i32 s24, s22, 448')
    a('s_mul_i32 s25, s23, 192')
    a('s_add_u32 s25, s25, s24')
    a('s_lshl_b32 s26, s23, 5')
    a('s_add_u32 s26, s26, s24')
    a('s_add_u32 s26, s26, 192')
    for (dst, add) in ((7, 0), (8, 64)):
        a(f'v_add_u32 v10, {add}, v1')
        a('v_mul_u32_u24 v12, 0x124a, v10')
        a('v_lshrrev_b32 v12, 16, v12')
        a('v_mul_u32_u24 v13, 14, v12')
        a('v_sub_u32 v13, v10, v13')
        k_of(12, 11, 14)
        a('s_movk_i32 s21, 7168')
        a(f'v_mul_lo_u32 v{dst}, v11, s21')
        a(f'v_lshl_add_u32 v{dst}, v13, 4, v{dst}')
        a('v_mov_b32 v14, s25')
        a('v_mov_b32 v15, s26')
        a('v_cmp_gt_u32 vcc, 12, v13')
        a('v_cndmask_b32 v14, v15, v14, vcc')
        a(f'v_add_u32 v{dst}, v{dst}, v14')
    a('v_lshrrev_b32 v10, 5, v1')
    a('v_mul_u32_u24 v10, 3328, v10')
    a('v_bfe_u32 v11, v1, 2, 3')
    a('v_and_b32 v12, 3, v1')
    a('v_lshl_add_u32 v10, v12, 3, v10')
    a('v_lshl_add_u32 v16, v11, 6, v10')
    a('v_bfe_u32 v12, v1, 4, 1')
    a('v_lshl_add_u32 v16, v12, 5, v16')
    a('v_xor_b32 v17, 32, v16')
    a('v_mul_u32_u24 v11, 224, v11')
    a('v_add_u32 v18, v10, v11')
    a('v_add_u32 v18, 1536, v18')
    a('s_waitcnt lgkmcnt(0)')
    srd(a, 44, 4, 5, 1024 * 6144)
    srd(a, 48, 8, 9, 1024 * 7168)
    srd(a, 52, 12, 13, 4 << 20)
    srd(a, 56, 12, 13, WS_BYTES)
    srd(a, 60, 6, 7, 65536)
    srd(a, 64, 10, 11, 7168)
    a('s_mul_i32 s27, s18, 3328')
    a('s_mov_b32 s40, 0x%x' % LOG2E)
    a('s_mov_b32 s30, 0')
    a('s_mov_b32 s31, 0')
    a('s_mov_b32 s32, s27')
    a('s_mov_b32 s33, 0')
    a('s_mov_b32 s36, 0xffffffff')
    a('s_mov_b32 s37, 0')
    a('s_mov_b32 s38, 0xffffffff')
    a('s_mov_b32 s39, 0x0000ffff')
    vm = VM()
    def dma(part, s):
        if part == 0:
            a('s_mov_b32 m0, s32')
            a('buffer_load_dwordx4 v6, s[44:47], s30 offen lds')
        elif part == 1:
            a('s_add_u32 m0, s32, 1024')
            a('s_add_u32 s41, s30, 4096')
            a('s_mov_b64 exec, s[36:37]')
            a('buffer_load_dwordx4 v6, s[44:47], s41 offen lds')
            a('s_mov_b64 exec, -1')
        elif part == 2:
            a('s_add_u32 m0, s32, 1536')
            a('buffer_load_dwordx4 v7, s[48:51], s31 offen lds')
        else:
            a('s_add_u32 m0, s32, 2560')
            a('s_mov_b64 exec, s[38:39]')
            a('buffer_load_dwordx4 v8, s[48:51], s31 offen lds')
            a('s_mov_b64 exec, -1')
            a('s_add_u32 s30, s30, %d' % (64 * 6144))
            a('s_add_u32 s31, s31, %d' % (64 * 7168))
            a('s_add_u32 s32, s32, %d' % STG)
            a('s_cmp_ge_u32 s32, %d' % (NS * STG))
            a('s_cselect_b32 s41, %d, 0' % (NS * STG))
            a('s_sub_u32 s32, s32, s41')
        vm.issue(('B', s))
    def aload(t, rt):
        r = AF + ((t & 3) * 2 + rt) * 4
        a(f'buffer_load_dwordx4 v[{r}:{r+3}], v5, s[52:55], s33 offen offset:{1024*rt}')
        if rt == 1: a('s_add_u32 s33, s33, 0x20000')
        vm.issue(('A', t))
    def prologue(emit):
        def D(p, s):
            if emit: dma(p, s)
            else: vm.issue(('B', s))
        def A_(t, rt):
            if emit: aload(t, rt)
            else: vm.issue(('A', t))
        for p in range(4): D(p, 0)
        A_(0, 0); A_(0, 1); A_(1, 0); A_(1, 1)
        for p in range(4): D(p, 1)
        A_(2, 0); A_(2, 1)
        for s in range(2, PD):
            for p in range(4): D(p, s)
        if emit:
            a('s_and_b32 s41, s18, 1')
            a('s_lshl_b32 s41, s41, 10')
            a('s_add_u32 m0, s41, %d' % WPHI_LDS)
            a('s_lshl_b32 s42, s17, 11')
            a('s_add_u32 s42, s42, s41')
            a('v_lshlrev_b32 v9, 4, v1')
            a('buffer_load_dwordx4 v9, s[60:63], s42 offen lds')
        vm.issue(('W', 0))

    def rd(n, half):
        nb = n % 52
        tt, ct = nb // 13, nb % 13
        stg, kk = tt >> 1, tt & 1
        off = stg * STG + kk * 4 * RG + half * 2 * RG
        if ct < 6:
            base = 21 + (ct & 1); off += (ct >> 1) * 512
        else:
            base = 23; off += (ct - 6) * 32
        r = BF + ct * 4 + half * 2
        a(f'ds_read_b64_tr_b16 v[{r}:{r+1}], v{base} offset:{off}')

    W = {}
    def body(it, emit):
        def rec(key, tag):
            v = vm.need(tag)
            W[key] = min(W.get(key, 63), v)
        for n in range(52):
            tt, ct = n // 13, n % 13
            t = it * 4 + tt
            nxt = n + LA
            if nxt % 26 == 0:
                s = it * 2 + nxt // 26
                if not emit: rec(('B', n), ('B', s))
                else:
                    a('s_waitcnt vmcnt(%d)' % W[('B', n)])
                    a('s_barrier')
                    if nxt == 52:
                        a('s_add_u32 s35, s35, %d' % (2 * STG))
                        a('s_cmp_ge_u32 s35, %d' % (NS * STG))
                        a('s_cselect_b32 s35, 0, s35')
                        a('v_add_u32 v21, s35, v16')
                        a('v_add_u32 v22, s35, v17')
                        a('v_add_u32 v23, s35, v18')
            if ct == 0:
                if not emit: rec(('A', n), ('A', t))
                else: a('s_waitcnt vmcnt(%d) lgkmcnt(%d)' % (W[('A', n)], 2 * (LA - 1)))
            elif emit:
                a('s_waitcnt lgkmcnt(%d)' % (2 * (LA - 1)))
            if emit:
                for rt in range(2):
                    A = AF + ((t & 3) * 2 + rt) * 4
                    B = BF + ct * 4
                    D = acc(ct, rt)
                    if ct in (4, 5):
                        a(f'v_mfma_f32_16x16x32_bf16 v[{D}:{D+3}], v[{A}:{A+3}], v[{B}:{B+3}], v[{D}:{D+3}]')
                    else:
                        a(f'v_mfma_f32_16x16x32_bf16 v[{D}:{D+3}], v[{B}:{B+3}], v[{A}:{A+3}], v[{D}:{D+3}]')
                    rd(n + LA, rt)
            rel = n % 26
            if rel in (0, 5, 10, 15):
                p = (0, 5, 10, 15).index(rel)
                s = it * 2 + n // 26 + PD
                if emit: dma(p, s)
                else: vm.issue(('B', s))
            if ct in (2, 8):
                rt = 0 if ct == 2 else 1
                if emit: aload(t + 3, rt)
                else: vm.issue(('A', t + 3))
    prologue(False)
    w0 = vm.need(('B', 0))
    for it in range(8): body(it, False)
    vm.ops = []
    prologue(True)
    for r in range(ACC, ACC + 104):
        a(f'v_mov_b32 v{r}, 0')
    a('v_mov_b32 v21, v16')
    a('v_mov_b32 v22, v17')
    a('v_mov_b32 v23, v18')
    a('s_mov_b32 s35, 0')
    a('s_mov_b32 s34, 0')
    a('s_waitcnt vmcnt(%d)' % w0)
    a('s_barrier')
    stamp(a, 1)
    if STAMP: a('s_waitcnt lgkmcnt(0)')
    for n in range(LA):
        rd(n, 0); rd(n, 1)
    a.raw('.p2align 6')
    a.label('L_g1_loop')
    body(0, True)
    a('s_add_u32 s34, s34, 1')
    a('s_cmp_lt_u32 s34, 8')
    a('s_cbranch_scc1 L_g1_loop')
    stamp(a, 2)
    a('s_waitcnt vmcnt(0) lgkmcnt(0)')
    a('v_lshlrev_b32 v10, 3, v4')
    for i in range(6):
        a(f'buffer_load_dwordx2 v[{AF+2*i}:{AF+2*i+1}], v10, s[64:67], s25 offen offset:{32*i}')
    a(f'buffer_load_dwordx2 v[{AF+12}:{AF+13}], v10, s[64:67], s26 offen offset:192')
    a('s_barrier')
    WP = AF + 16
    a('v_lshrrev_b32 v10, 2, v1')
    a('v_lshlrev_b32 v10, 6, v10')
    a('v_and_b32 v11, 3, v1')
    a('v_lshl_add_u32 v10, v11, 3, v10')
    a('v_add_u32 v10, %d, v10' % WPHI_LDS)
    for ft in range(2):
        for half in range(2):
            a(f'ds_read_b64_tr_b16 v[{WP+ft*4+half*2}:{WP+ft*4+half*2+1}], v10 offset:{half*1024+ft*32}')
    a('s_lshl_b32 s41, s17, 18')
    a('s_lshl_b32 s42, s19, 1')
    a('s_add_u32 s41, s41, s42')
    a('s_add_u32 s41, s41, %d' % PQ_OFF)
    a('v_lshlrev_b32 v11, 4, v1')
    a('s_mul_i32 s42, s18, 6144')
    a('v_lshlrev_b32 v12, 5, v3')
    a('v_lshl_add_u32 v12, v4, 3, v12')
    a('v_add_u32 v12, s42, v12')
    a('v_add_u32 v13, s42, v11')
    T = BF
    PK = BF + 24
    P = BF + 28
    OUT = BF + 36
    a('s_waitcnt lgkmcnt(0)')
    for which in (1, 0):
        for rt in range(2):
            c0, c1 = acc(2 * which, rt), acc(2 * which + 1, rt)
            a(f'v_cvt_pk_bf16_f32 v{PK}, v{c0}, v{c0+1}')
            a(f'v_cvt_pk_bf16_f32 v{PK+1}, v{c0+2}, v{c0+3}')
            a(f'v_cvt_pk_bf16_f32 v{PK+2}, v{c1}, v{c1+1}')
            a(f'v_cvt_pk_bf16_f32 v{PK+3}, v{c1+2}, v{c1+3}')
            for ft in range(2):
                a(f'v_mfma_f32_16x16x32_bf16 v[{P+4*ft}:{P+4*ft+3}], v[{WP+4*ft}:{WP+4*ft+3}], v[{PK}:{PK+3}], 0')
            dual_softmax(a, P, T, OUT)
            if which == 0:
                a(f'buffer_store_dwordx4 v[{OUT}:{OUT+3}], v11, s[56:59], s41 offen offset:{rt*2048}')
                a(f'buffer_store_dwordx4 v[{OUT+4}:{OUT+7}], v11, s[56:59], s41 offen offset:{rt*2048+1024}')
            else:
                for ftt in range(4):
                    a(f'ds_write_b64 v12, v[{OUT+2*ftt}:{OUT+2*ftt+1}] offset:{ftt*1024+rt*512}')
        if which == 1:
            for dt in range(2):
                c0, c1 = acc(4 + dt, 0), acc(4 + dt, 1)
                a(f'v_cvt_pk_bf16_f32 v{PK}, v{c0}, v{c0+1}')
                a(f'v_cvt_pk_bf16_f32 v{PK+1}, v{c0+2}, v{c0+3}')
                a(f'v_cvt_pk_bf16_f32 v{PK+2}, v{c1}, v{c1+1}')
                a(f'v_cvt_pk_bf16_f32 v{PK+3}, v{c1+2}, v{c1+3}')
                a(f'ds_write_b128 v13, v[{PK}:{PK+3}] offset:{4096+dt*1024}')
    stamp(a, 3)
    a('s_waitcnt vmcnt(4)')
    BI = BF
    for i in range(7):
        for h in range(2):
            a(f'v_lshlrev_b32 v{BI+4*i+2*h}, 16, v{AF+2*i+h}')
            a(f'v_and_b32 v{BI+4*i+2*h+1}, 0xffff0000, v{AF+2*i+h}')
    a('s_mul_i32 s42, s22, 7')
    a('s_add_u32 s43, s42, 6')
    a('s_mul_i32 s41, s23, 3')
    a('s_add_u32 s42, s42, s41')
    a('s_lshl_b32 s42, s42, 17')
    a('s_add_u32 s42, s42, s19')
    a('s_add_u32 s42, s42, %d' % HO_OFF)
    a('s_lshl_b32 s43, s43, 17')
    a('s_add_u32 s43, s43, s19')
    a('s_lshl_b32 s41, s23, 3')
    a('s_add_u32 s43, s43, s41')
    a('s_add_u32 s43, s43, %d' % HO_OFF)
    HT = BF + 28
    for i in range(7):
        for rt in range(2):
            c = acc(6 + i, rt)
            for r in range(4):
                a(f'v_add_f32 v{c+r}, v{c+r}, v{BI+4*i+r}')
            for r in range(4):
                a(f'v_max_f32 v{c+r}, 0, v{c+r}')
            for r in range(4):
                a(f'v_mul_f32 v{c+r}, v{c+r}, v{c+r}')
            o = HT + rt * 4 + (i & 1) * 2 + ((i >> 1) & 1) * 8
            a(f'v_cvt_pk_bf16_f32 v{o}, v{c}, v{c+1}')
            a(f'v_cvt_pk_bf16_f32 v{o+1}, v{c+2}, v{c+3}')
            if i & 1:
                a(f'buffer_store_dwordx4 v[{o-2}:{o+1}], v11, s[56:59], s42 offen offset:{rt*1024}')
            elif i == 6:
                a(f'buffer_store_dwordx2 v[{o}:{o+1}], v11, s[56:59], s43 offen offset:{rt*1024}')
        if i & 1:
            a('s_add_u32 s42, s42, 0x20000')
    stamp(a, 4)
    a('s_waitcnt lgkmcnt(0)')
    a('s_barrier')
    a('s_lshr_b32 s41, s18, 1')
    a('s_and_b32 s42, s18, 1')
    a('s_lshl_b32 s43, s41, 10')
    a('v_lshlrev_b32 v12, 3, v1')
    a('v_add_u32 v12, s43, v12')
    a('s_lshl_b32 s43, s42, 10')
    a('v_add_u32 v13, s43, v11')
    KA = ACC
    KB = ACC + 32
    KD = ACC + 64; KZ = ACC + 68; ONE = ACC + 72
    for c in range(8):
        a(f'ds_read_b64_tr_b16 v[{KA+4*c}:{KA+4*c+1}], v12 offset:{c*6144}')
        a(f'ds_read_b64_tr_b16 v[{KA+4*c+2}:{KA+4*c+3}], v12 offset:{c*6144+512}')
        a(f'ds_read_b128 v[{KB+4*c}:{KB+4*c+3}], v13 offset:{c*6144+4096}')
        if c == 3: a('s_waitcnt lgkmcnt(0)')
    for r in range(4):
        a(f'v_mov_b32 v{ONE+r}, 0x3f803f80')
    a('s_waitcnt lgkmcnt(0)')
    for c in range(8):
        cc = '0' if c == 0 else f'v[{KD}:{KD+3}]'
        cz = '0' if c == 0 else f'v[{KZ}:{KZ+3}]'
        a(f'v_mfma_f32_16x16x32_bf16 v[{KD}:{KD+3}], v[{KA+4*c}:{KA+4*c+3}], v[{KB+4*c}:{KB+4*c+3}], {cc}')
        a(f'v_mfma_f32_16x16x32_bf16 v[{KZ}:{KZ+3}], v[{KA+4*c}:{KA+4*c+3}], v[{ONE}:{ONE+3}], {cz}')
    a('s_lshl_b32 s43, s17, 3')
    a('s_add_u32 s43, s43, s16')
    a('s_mul_i32 s43, s43, %d' % KV_STRIDE)
    a('s_add_u32 s43, s43, %d' % KV_OFF)
    a('s_lshl_b32 s42, s18, 10')
    a('s_add_u32 s42, s42, s43')
    a('s_lshl_b32 s41, s41, 6')
    a('s_add_u32 s41, s41, s43')
    a('s_add_u32 s41, s41, 8192')
    a('v_lshlrev_b32 v12, 4, v4')
    a(f'buffer_store_dwordx4 v[{KD}:{KD+3}], v11, s[56:59], s42 offen')
    a('v_cmp_eq_u32 vcc, 0, v3')
    a('s_and_saveexec_b64 s[68:69], vcc')
    a(f'buffer_store_dwordx4 v[{KZ}:{KZ+3}], v12, s[56:59], s41 offen')
    stamp_final(a, 5, 1, 12, 8)
    a.label('L_g1_done')
    a('s_endpgm')
    return name, '(256,1,1)', '(512,1,1)', LDS, kdesc(name, 256, 96)

def gen_o(a):
    name = 'o_kernel'
    kstart(a, name)
    a('s_cmp_ge_u32 s2, 256')
    a('s_cbranch_scc1 L_o_done')
    a('s_load_dwordx2 s[12:13], s[0:1], 88')
    a('s_and_b32 s14, s2, 7')
    a('s_lshr_b32 s15, s2, 3')
    a('s_and_b32 s16, s15, 7')
    a('s_lshr_b32 s15, s15, 3')
    a('s_lshl_b32 s14, s14, 2')
    a('s_add_u32 s17, s14, s15')
    a('v_and_b32 v1, 63, v0')
    a('v_lshrrev_b32 v2, 6, v0')
    a('v_readfirstlane_b32 s18, v2')
    a('v_lshrrev_b32 v4, 4, v1')
    a('v_lshlrev_b32 v11, 4, v1')
    a('v_lshlrev_b32 v12, 4, v4')
    a('s_lshl_b32 s19, s16, 14')
    a('s_lshl_b32 s20, s18, 11')
    a('s_add_u32 s19, s19, s20')
    a('s_waitcnt lgkmcnt(0)')
    srd(a, 56, 12, 13, WS_BYTES)
    a('s_mul_i32 s43, s17, %d' % (8 * KV_STRIDE))
    a('s_add_u32 s43, s43, %d' % KV_OFF)
    a('s_lshl_b32 s42, s18, 10')
    a('s_add_u32 s42, s42, s43')
    a('s_lshr_b32 s41, s18, 1')
    a('s_lshl_b32 s44, s41, 6')
    a('s_add_u32 s44, s44, s43')
    a('s_add_u32 s44, s44, 8192')
    for p in range(8):
        a(f'buffer_load_dwordx4 v[{16+4*p}:{19+4*p}], v11, s[56:59], s42 offen')
        a(f'buffer_load_dwordx4 v[{48+4*p}:{51+4*p}], v12, s[56:59], s44 offen')
        a('s_add_u32 s42, s42, %d' % KV_STRIDE)
        a('s_add_u32 s44, s44, %d' % KV_STRIDE)
    a('s_lshl_b32 s45, s17, 18')
    a('s_lshl_b32 s46, s19, 1')
    a('s_add_u32 s45, s45, s46')
    a('s_add_u32 s45, s45, %d' % PQ_OFF)
    for j in range(4):
        a(f'buffer_load_dwordx4 v[{80+4*j}:{83+4*j}], v11, s[56:59], s45 offen offset:{1024*j}')
    a('s_waitcnt vmcnt(4)')
    for p in range(1, 8):
        for r in range(4):
            a(f'v_add_f32 v{16+r}, v{16+r}, v{16+4*p+r}')
            a(f'v_add_f32 v{48+r}, v{48+r}, v{48+4*p+r}')
    a('v_cvt_pk_bf16_f32 v20, v16, v17')
    a('v_cvt_pk_bf16_f32 v21, v18, v19')
    a('v_cvt_pk_bf16_f32 v22, v48, v49')
    a('v_cvt_pk_bf16_f32 v23, v50, v51')
    a('s_lshr_b32 s42, s41, 1')
    a('s_mul_i32 s42, s42, 3072')
    a('s_and_b32 s44, s41, 1')
    a('s_lshl_b32 s44, s44, 3')
    a('s_add_u32 s42, s42, s44')
    a('v_add_u32 v13, s42, v11')
    a('s_and_b32 s44, s18, 1')
    a('s_lshl_b32 s44, s44, 10')
    a('v_add_u32 v14, s44, v13')
    a('ds_write_b64 v14, v[20:21]')
    a('ds_write_b64 v13, v[22:23] offset:2048')
    a('s_waitcnt lgkmcnt(0)')
    a('s_barrier')
    for f in range(6):
        a(f'ds_read_b128 v[{16+4*f}:{19+4*f}], v11 offset:{1024*f}')
    a('s_add_u32 s42, s17, 112')
    a('s_lshl_b32 s42, s42, 17')
    a('s_add_u32 s42, s42, s19')
    a('s_add_u32 s42, s42, %d' % HO_OFF)
    a('s_waitcnt vmcnt(0) lgkmcnt(0)')
    for rt in range(2):
        D = 48 + rt * 12
        for dt in range(3):
            a(f'v_mfma_f32_16x16x32_bf16 v[{D+4*dt}:{D+4*dt+3}], v[{16+4*dt}:{19+4*dt}], v[{80+8*rt}:{83+8*rt}], 0')
        for dt in range(3):
            a(f'v_mfma_f32_16x16x32_bf16 v[{D+4*dt}:{D+4*dt+3}], v[{28+4*dt}:{31+4*dt}], v[{84+8*rt}:{87+8*rt}], v[{D+4*dt}:{D+4*dt+3}]')
    for rt in range(2):
        D = 48 + rt * 12
        round_bf16(a, D + 8)
        a(f'v_add_f32 v{D+8}, 0x358637bd, v{D+8}')
        round_bf16(a, D + 8)
        a(f'v_rcp_f32 v{D+8}, v{D+8}')
        for j in range(0, 8, 2):
            a(f'v_cvt_pk_bf16_f32 v{D+9}, v{D+j}, v{D+j+1}')
            a(f'v_lshlrev_b32 v{D+j}, 16, v{D+9}')
            a(f'v_and_b32 v{D+j+1}, 0xffff0000, v{D+9}')
            a(f'v_mul_f32 v{D+j}, v{D+j}, v{D+8}')
            a(f'v_mul_f32 v{D+j+1}, v{D+j+1}, v{D+8}')
            a(f'v_cvt_pk_bf16_f32 v{72+rt*4+j//2}, v{D+j}, v{D+j+1}')
        a(f'buffer_store_dwordx4 v[{72+rt*4}:{75+rt*4}], v11, s[56:59], s42 offen offset:{rt*1024}')
    a.label('L_o_done')
    a('s_endpgm')
    return name, '(256,1,1)', '(512,1,1)', 6144, kdesc(name, 96, 64)

def gen_g2(a, NS=8, LA=4):
    name = 'g2_kernel'
    STG = 16384
    PD = NS - 2
    LDS = NS * STG
    ACC = 24; BF = 56; AF = 88
    AD = 7
    def acc(ct, rt): return ACC + (ct * 2 + rt) * 4
    kstart(a, name)
    a('s_cmp_ge_u32 s2, 256')
    a('s_cbranch_scc1 L_g2_done')
    stamp_start(a)
    a('s_load_dwordx2 s[4:5], s[0:1], 0')
    a('s_load_dwordx2 s[6:7], s[0:1], 24')
    a('s_load_dwordx4 s[8:11], s[0:1], 56')
    a('s_load_dwordx2 s[12:13], s[0:1], 72')
    a('s_load_dwordx2 s[14:15], s[0:1], 88')
    a('s_and_b32 s20, s2, 7')
    a('s_lshr_b32 s21, s2, 3')
    a('s_lshr_b32 s16, s20, 1')
    a('s_lshl_b32 s16, s16, 2')
    a('s_and_b32 s22, s21, 3')
    a('s_add_u32 s16, s16, s22')
    a('s_and_b32 s17, s20, 1')
    a('s_lshl_b32 s17, s17, 3')
    a('s_lshr_b32 s22, s21, 2')
    a('s_add_u32 s17, s17, s22')
    a('v_and_b32 v1, 63, v0')
    a('v_lshrrev_b32 v2, 6, v0')
    a('v_readfirstlane_b32 s18, v2')
    a('v_and_b32 v3, 15, v1')
    a('v_lshrrev_b32 v4, 4, v1')
    a('s_lshl_b32 s19, s16, 13')
    a('s_lshl_b32 s20, s18, 11')
    a('s_add_u32 s19, s19, s20')
    a('v_lshlrev_b32 v5, 4, v1')
    a('v_add_u32 v5, s19, v5')
    a('v_lshrrev_b32 v10, 3, v1')
    a('s_lshl_b32 s20, s18, 5')
    a('v_add_u32 v10, s20, v10')
    a('v_lshlrev_b32 v6, 11, v10')
    a('v_bfe_u32 v11, v1, 1, 2')
    a('v_xor_b32 v11, v11, v4')
    a('v_lshl_add_u32 v6, v11, 5, v6')
    a('v_and_b32 v11, 1, v1')
    a('v_lshl_add_u32 v6, v11, 4, v6')
    a('s_lshl_b32 s20, s17, 7')
    a('v_add_u32 v6, s20, v6')
    for j in range(1, 4):
        a(f'v_add_u32 v{6+j}, {j*8*2048}, v6')
    a('v_lshrrev_b32 v10, 2, v1')
    a('v_lshlrev_b32 v11, 7, v10')
    a('v_and_b32 v12, 3, v1')
    a('v_lshl_add_u32 v11, v12, 3, v11')
    a('v_bfe_u32 v12, v1, 3, 2')
    a('v_lshl_add_u32 v12, v12, 5, v11')
    for ct in range(4):
        a(f'v_xor_b32 v{12+ct}, {ct*32}, v12') if ct else None
    a('s_waitcnt lgkmcnt(0)')
    srd(a, 44, 8, 9, 3584 * 2048)
    srd_off(a, 52, 14, 15, HO_OFF, HO_BYTES)
    srd(a, 56, 4, 5, 4 << 20)
    srd(a, 60, 12, 13, 4 << 20)
    srd(a, 64, 10, 11, 2048)
    a('s_lshl_b32 s27, s18, 12')
    a('s_mov_b32 s30, 0')
    a('s_mov_b32 s31, 0')
    a('s_mov_b32 s32, s27')
    a('s_mov_b32 s33, 0')
    vm = VM()
    def dma(p, s):
        if p == 0: a('s_mov_b32 m0, s32')
        else: a(f's_add_u32 m0, s32, {1024*p}')
        a(f'buffer_load_dwordx4 v{6+p}, s[44:47], s30 offen lds')
        if p == 3:
            a('s_add_u32 s30, s30, 0x40000')
            a('s_add_u32 s32, s32, %d' % STG)
            a('s_cmp_ge_u32 s32, %d' % (NS * STG))
            a('s_cselect_b32 s41, %d, 0' % (NS * STG))
            a('s_sub_u32 s32, s32, s41')
            a('s_add_u32 s31, s31, 1')
            a('s_cmp_eq_u32 s31, 28')
            a('s_cselect_b32 s44, s6, s44')
            a('s_cselect_b32 s45, s7, s45')
            a('s_cselect_b32 s46, 0x200000, s46')
            a('s_cselect_b32 s30, 0, s30')
        vm.issue(('B', s))
    def aload(t, rt):
        r = AF + ((t & 7) * 2 + rt) * 4
        a(f'buffer_load_dwordx4 v[{r}:{r+3}], v5, s[52:55], s33 offen offset:{1024*rt}')
        if rt == 1: a('s_add_u32 s33, s33, 0x20000')
        vm.issue(('A', t))
    def prologue(emit):
        def D(p, s):
            if emit: dma(p, s)
            else: vm.issue(('B', s))
        def A_(t, rt):
            if emit: aload(t, rt)
            else: vm.issue(('A', t))
        for p in range(4): D(p, 0)
        for t in range(4): A_(t, 0); A_(t, 1)
        for p in range(4): D(p, 1)
        for t in range(4, AD): A_(t, 0); A_(t, 1)
        for s in range(2, PD):
            for p in range(4): D(p, s)
    NF = 32
    def rd(n, half):
        nb = n % NF
        tt, ct = nb // 4, nb % 4
        off = tt * 4096 + half * 2048
        r = BF + (n % 8) * 4 + half * 2
        a(f'ds_read_b64_tr_b16 v[{r}:{r+1}], v{16+ct} offset:{off}')
    W = {}
    def body(it, emit):
        def rec(key, tag):
            W[key] = min(W.get(key, 63), vm.need(tag))
        for n in range(NF):
            tt, ct = n // 4, n % 4
            t = it * 8 + tt
            nxt = n + LA
            if nxt % 16 == 0:
                s = it * 2 + nxt // 16
                if not emit: rec(('B', n), ('B', s))
                else:
                    a('s_waitcnt vmcnt(%d)' % W[('B', n)])
                    a('s_barrier')
                    if nxt == NF:
                        a('s_add_u32 s35, s35, %d' % (2 * STG))
                        a('s_cmp_ge_u32 s35, %d' % (NS * STG))
                        a('s_cselect_b32 s35, 0, s35')
                        for c in range(4):
                            a(f'v_add_u32 v{16+c}, s35, v{12+c}')
            if ct == 0:
                if not emit: rec(('A', n), ('A', t))
                else: a('s_waitcnt vmcnt(%d) lgkmcnt(%d)' % (W[('A', n)], 2 * (LA - 1)))
            elif emit:
                a('s_waitcnt lgkmcnt(%d)' % (2 * (LA - 1)))
            if emit:
                for rt in range(2):
                    A = AF + ((t & 7) * 2 + rt) * 4
                    B = BF + (n % 8) * 4
                    D = acc(ct, rt)
                    a(f'v_mfma_f32_16x16x32_bf16 v[{D}:{D+3}], v[{B}:{B+3}], v[{A}:{A+3}], v[{D}:{D+3}]')
                    rd(n + LA, rt)
            rel = n % 16
            if rel in (0, 3, 6, 9):
                p = (0, 3, 6, 9).index(rel)
                s = it * 2 + n // 16 + PD
                if emit: dma(p, s)
                else: vm.issue(('B', s))
            if ct in (1, 2):
                rt = ct - 1
                if emit: aload(t + AD, rt)
                else: vm.issue(('A', t + AD))
    prologue(False)
    w0 = vm.need(('B', 0))
    for it in range(18): body(it, False)
    vm.ops = []
    prologue(True)
    for r in range(ACC, ACC + 32):
        a(f'v_mov_b32 v{r}, 0')
    for c in range(4):
        a(f'v_mov_b32 v{16+c}, v{12+c}')
    a('s_mov_b32 s35, 0')
    a('s_mov_b32 s34, 0')
    a('s_waitcnt vmcnt(%d)' % w0)
    a('s_barrier')
    stamp(a, 1)
    if STAMP: a('s_waitcnt lgkmcnt(0)')
    for n in range(LA):
        rd(n, 0); rd(n, 1)
    a.raw('.p2align 6')
    a.label('L_g2_loop')
    body(0, True)
    a('s_add_u32 s34, s34, 1')
    a('s_cmp_lt_u32 s34, 18')
    a('s_cbranch_scc1 L_g2_loop')
    stamp(a, 2)
    a('s_waitcnt vmcnt(0) lgkmcnt(0)')
    a('s_lshl_b32 s41, s19, 5')
    a('s_lshl_b32 s42, s17, 7')
    a('s_add_u32 s41, s41, s42')
    a('v_lshlrev_b32 v10, 11, v3')
    a('v_lshl_add_u32 v10, v4, 3, v10')
    a('v_add_u32 v10, s41, v10')
    a('v_add_u32 v11, 0x8000, v10')
    a('v_lshlrev_b32 v20, 3, v4')
    X = AF; Bb = AF + 16
    for rt in range(2):
        for ct in range(4):
            r = X + (rt * 4 + ct) * 2
            a(f'buffer_load_dwordx2 v[{r}:{r+1}], v{10+rt}, s[56:59], 0 offen offset:{ct*32}')
    for ct in range(4):
        a(f'buffer_load_dwordx2 v[{Bb+2*ct}:{Bb+2*ct+1}], v20, s[64:67], s42 offen offset:{ct*32}')
    a('s_waitcnt vmcnt(0)')
    T = AF + 32
    for ct in range(4):
        for h in range(2):
            a(f'v_lshlrev_b32 v{T+4*ct+2*h}, 16, v{Bb+2*ct+h}')
            a(f'v_and_b32 v{T+4*ct+2*h+1}, 0xffff0000, v{Bb+2*ct+h}')
    for rt in range(2):
        for ct in range(4):
            c = acc(ct, rt); r = X + (rt * 4 + ct) * 2
            for h in range(2):
                a(f'v_lshlrev_b32 v21, 16, v{r+h}')
                a(f'v_and_b32 v22, 0xffff0000, v{r+h}')
                a(f'v_add_f32 v{c+2*h}, v{c+2*h}, v{T+4*ct+2*h}')
                a(f'v_add_f32 v{c+2*h+1}, v{c+2*h+1}, v{T+4*ct+2*h+1}')
                a(f'v_add_f32 v{c+2*h}, v{c+2*h}, v21')
                a(f'v_add_f32 v{c+2*h+1}, v{c+2*h+1}, v22')
                a(f'v_cvt_pk_bf16_f32 v{r+h}, v{c+2*h}, v{c+2*h+1}')
            a(f'buffer_store_dwordx2 v[{r}:{r+1}], v{10+rt}, s[60:63], 0 offen offset:{ct*32}')
    stamp_final(a, 3, 3, 14, 4)
    a.label('L_g2_done')
    a('s_endpgm')
    return name, '(256,1,1)', '(256,1,1)', LDS, kdesc(name, 160, 96)

def build(path, kernels):
    a = Asm()
    infos = [k(a) for k in kernels]
    out = HEADER
    for (n, g, b, lds, _) in infos:
        out += f'; @launch kernel={n} grid={g} block={b} lds={lds}\n'
    out += '.amdgcn_target "amdgcn-amd-amdhsa--gfx950"\n'
    out += a.text()
    seen = set()
    for (n, g, b, lds, d) in infos:
        if n not in seen: out += d
        seen.add(n)
    open(path, 'w').write(out)
    print('wrote', path, 'nops', a.nops, 'lines', len(a.out))

if __name__ == '__main__':
    path = sys.argv[1] if len(sys.argv) > 1 else 'cdna_kernels/%s.s' % NAME
    if '--stamp' in sys.argv: STAMP = True
    build(path, [gen_ln, gen_g1, gen_o, gen_g2])
```

```python
import sys
from asmlib import *
import gen
from gen import *
REG = 72 * 1024
def gen_w(a, name, mode, pol=''):
    kstart(a, name)
    a('s_cmp_ge_u32 s2, 256')
    a(f's_cbranch_scc1 L_{name}_done')
    a('s_load_dwordx2 s[12:13], s[0:1], 88')
    a('v_and_b32 v1, 63, v0')
    a('v_lshrrev_b32 v2, 6, v0')
    a('v_readfirstlane_b32 s18, v2')
    a('v_lshlrev_b32 v5, 4, v0')
    a('s_and_b32 s20, s2, 7')
    a('s_lshr_b32 s21, s2, 3')
    a('s_lshl_b32 s20, s20, 5')
    a('s_add_u32 s20, s20, s21')
    a(f's_mul_i32 s33, s20, {REG}')
    a('s_waitcnt lgkmcnt(0)')
    a('s_add_u32 s52, s12, %d' % (64 << 20))
    a('s_addc_u32 s53, s13, 0')
    a('s_mov_b32 s54, %d' % (192 << 20))
    a('s_mov_b32 s55, 0x00020000')
    for i in range(4): a(f'v_mov_b32 v{8+i}, v0')
    for i in range(REG // 4096):
        if mode == 'w': a(f'buffer_store_dwordx4 v[8:11], v5, s[52:55], s33 offen {pol}')
        else: a(f'buffer_load_dwordx4 v[{12+4*i}:{15+4*i}], v5, s[52:55], s33 offen {pol}')
        a('s_add_u32 s33, s33, 4096')
    a('s_waitcnt vmcnt(0)')
    a.label(f'L_{name}_done')
    a('s_endpgm')
    return name, '(256,1,1)', '(256,1,1)', 0, kdesc(name, 128, 96)
def gen_r(a, name, shift, nreg=8, depth=16, nw=4):
    kstart(a, name)
    a('s_cmp_ge_u32 s2, 256')
    a(f's_cbranch_scc1 L_{name}_done')
    a('s_load_dwordx2 s[12:13], s[0:1], 88')
    a('v_and_b32 v1, 63, v0')
    a('v_lshrrev_b32 v2, 6, v0')
    a('v_readfirstlane_b32 s18, v2')
    a('v_lshlrev_b32 v5, 4, v0')
    a(f's_add_u32 s20, s2, {shift}')
    a('s_and_b32 s20, s20, 7')
    a('s_lshr_b32 s21, s2, 3')
    a(f's_and_b32 s21, s21, {32//nreg-1}')
    a(f's_mul_i32 s21, s21, {nreg}')
    a('s_lshl_b32 s20, s20, 5')
    a('s_add_u32 s20, s20, s21')
    a(f's_mul_i32 s33, s20, {REG}')
    a('s_waitcnt lgkmcnt(0)')
    a('s_add_u32 s52, s12, %d' % (64 << 20))
    a('s_addc_u32 s53, s13, 0')
    a('s_mov_b32 s54, %d' % (192 << 20))
    a('s_mov_b32 s55, 0x00020000')
    a('s_mov_b32 s34, 0')
    a('s_barrier')
    stamp_start(a)
    a('s_waitcnt lgkmcnt(0)')
    iters = nreg * REG // (nw * 1024 * depth)
    a.raw('.p2align 6')
    a.label(f'L_{name}_loop')
    for d in range(depth):
        a(f'buffer_load_dwordx4 v[{8+4*d}:{11+4*d}], v5, s[52:55], s33 offen')
        a(f's_add_u32 s33, s33, {nw*1024}')
        a(f's_waitcnt vmcnt({depth-1})')
    a('s_add_u32 s34, s34, 1')
    a(f's_cmp_lt_u32 s34, {iters}')
    a(f's_cbranch_scc1 L_{name}_loop')
    stamp_final(a, 1, 0, 12, nw)
    a.label(f'L_{name}_done')
    a('s_endpgm')
    return name, '(256,1,1)', '(%d,1,1)' % (nw * 64), 0, kdesc(name, 128, 96)
if __name__ == '__main__':
    gen.STAMP = True
    cfgs = []
    i = 0
    for mode, pol in (('w', ''), ('w', 'sc1'), ('w', 'nt'), ('r', ''), ('none', '')):
        for shift in (0, 1):
            path = f'mb4/{i}.s'
            ks = []
            if mode != 'none': ks.append(lambda a: gen_w(a, 'w_kernel', mode, pol))
            ks.append(lambda a: gen_r(a, 'r_kernel', shift))
            build(path, ks)
            cfgs.append((path, 4, f'{mode} {pol} shift{shift}', 8 * REG))
            i += 1
    open('cfgs.txt', 'w').write(repr(cfgs))
```

```python
import sys
from asmlib import *
import gen
from gen import *

EX_OFF = 40 << 20
FL_OFF = 38 << 20
FL_BYTES = 262144 + 65536
WS2_BYTES = 48 << 20

def gen_g2v2(a, LA=4, PFD=4, PF=True, prio=False):
    name = 'g2_kernel'
    STG = 32768
    NS = 4
    LDS = NS * STG
    ACC = 24; BF = 88; AF = 120
    def acc(t, rt): return ACC + (t * 2 + rt) * 4
    kstart(a, name)
    a('s_cmp_ge_u32 s2, 256')
    a('s_cbranch_scc1 L_g2_done')
    stamp_start(a)
    a('s_load_dwordx2 s[4:5], s[0:1], 0')
    a('s_load_dwordx2 s[6:7], s[0:1], 24')
    a('s_load_dwordx4 s[8:11], s[0:1], 56')
    a('s_load_dwordx2 s[12:13], s[0:1], 72')
    a('s_load_dwordx2 s[14:15], s[0:1], 88')
    a('v_and_b32 v1, 63, v0')
    a('v_lshrrev_b32 v2, 6, v0')
    a('v_readfirstlane_b32 s18, v2')
    a('s_and_b32 s21, s2, 1')
    a('s_bfe_u32 s16, s2, 0x20001')
    a('s_lshl_b32 s16, s16, 2')
    a('s_bfe_u32 s20, s2, 0x20003')
    a('s_add_u32 s16, s16, s20')
    a('s_lshr_b32 s17, s2, 5')
    a('s_and_b32 s22, s18, 3')
    a('s_lshr_b32 s23, s18, 2')
    a('v_and_b32 v3, 15, v1')
    a('v_lshrrev_b32 v4, 4, v1')
    a('s_mul_i32 s19, s21, 72')
    a('s_lshl_b32 s25, s23, 1')
    a('s_add_u32 s25, s25, s19')
    a('s_lshl_b32 s25, s25, 17')
    a('s_lshl_b32 s42, s16, 13')
    a('s_lshl_b32 s43, s22, 11')
    a('s_add_u32 s42, s42, s43')
    a('s_add_u32 s25, s25, s42')
    a('v_lshlrev_b32 v5, 4, v1')
    a('v_add_u32 v5, s25, v5')
    a('s_lshl_b32 s25, s18, 15')
    a('s_lshl_b32 s43, s17, 8')
    a('s_add_u32 s25, s25, s43')
    a('v_bfe_u32 v10, v1, 1, 3')
    a('v_xor_b32 v10, v10, v4')
    a('v_lshlrev_b32 v6, 11, v4')
    a('v_and_b32 v11, 1, v1')
    a('v_lshl_add_u32 v6, v11, 4, v6')
    a('v_add_u32 v6, s25, v6')
    a('v_xor_b32 v11, 4, v10')
    a('v_lshl_add_u32 v7, v11, 5, v6')
    a('v_add_u32 v7, 8192, v7')
    a('v_lshl_add_u32 v6, v10, 5, v6')
    a('v_add_u32 v8, 16384, v6')
    a('v_add_u32 v9, 16384, v7')
    a('v_lshrrev_b32 v10, 2, v1')
    a('v_lshlrev_b32 v12, 8, v10')
    a('v_and_b32 v11, 3, v1')
    a('v_lshl_add_u32 v12, v11, 3, v12')
    a('v_and_b32 v10, 7, v10')
    a('v_lshl_add_u32 v12, v10, 5, v12')
    a('s_mul_i32 s25, s23, 16384+128')
    a('v_xor_b32 v12, s25, v12')
    for t in range(1, 8):
        a(f'v_xor_b32 v{12+t}, {t*32}, v12')
    a('s_lshl_b32 s25, s20, 16')
    a('s_lshl_b32 s26, s22, 14')
    a('s_add_u32 s25, s25, s26')
    a('s_add_u32 s25, s25, s43')
    a('v_lshrrev_b32 v10, 1, v1')
    a('v_lshlrev_b32 v10, 11, v10')
    a('v_and_b32 v11, 1, v1')
    a('v_lshl_add_u32 v10, v11, 7, v10')
    a('v_add_u32 v10, s25, v10')
    a('s_add_u32 s25, s19, s22')
    a('s_lshl_b32 s25, s25, 17')
    a('s_lshl_b32 s26, s16, 3')
    a('s_add_u32 s26, s26, s17')
    a('s_lshl_b32 s27, s26, 10')
    a('s_add_u32 s25, s25, s27')
    a('v_lshlrev_b32 v11, 7, v1')
    a('v_add_u32 v11, s25, v11')
    a('s_cmp_eq_u32 s23, 0')
    a('s_cselect_b64 vcc, -1, 0')
    a('v_cndmask_b32 v20, v11, v10, vcc')
    a('s_movk_i32 s40, 0xff')
    a('s_cselect_b32 s40, 0xffff, s40')
    a('s_mov_b32 s41, 0')
    a('s_mov_b32 s28, 0x80000')
    a('s_cselect_b32 s28, 0x40000, s28')
    a('s_mov_b32 s35, s26')
    a('s_waitcnt lgkmcnt(0)')
    a('s_mul_i32 s25, s21, %d' % (2304 * 2048))
    a('s_add_u32 s44, s8, s25')
    a('s_addc_u32 s45, s9, 0')
    a('s_cmp_eq_u32 s21, 0')
    a('s_mov_b32 s46, %d' % (1280 * 2048))
    a('s_cselect_b32 s46, %d, s46' % (2304 * 2048))
    a('s_cselect_b32 s26, 99, 10')
    a('s_mov_b32 s47, 0x00020000')
    a('s_add_u32 s52, s14, %d' % HO_OFF)
    a('s_addc_u32 s53, s15, 0')
    a('s_add_u32 s54, s19, 72')
    a('s_lshl_b32 s54, s54, 17')
    a('s_mov_b32 s55, 0x00020000')
    a('s_lshl_b32 s32, s18, 12')
    a('s_mov_b32 s30, 0')
    a('s_mov_b32 s31, 0')
    a('s_mov_b32 s33, 0')
    vm = VM()
    def dma(q, s, emit=True):
        if emit:
            if q == 0: a('s_mov_b32 m0, s32')
            else: a(f's_add_u32 m0, s32, {1024*q}')
            a(f'buffer_load_dwordx4 v{6+q}, s[44:47], s30 offen lds')
            if q == 3:
                a('s_add_u32 s30, s30, 0x40000')
                a('s_add_u32 s32, s32, %d' % STG)
                a('s_and_b32 s32, s32, %d' % (NS * STG - 1))
                a('s_add_u32 s31, s31, 1')
                a('s_cmp_eq_u32 s31, s26')
                a('s_cselect_b32 s44, s6, s44')
                a('s_cselect_b32 s45, s7, s45')
                a('s_cselect_b32 s46, 0x200000, s46')
                a('s_cselect_b32 s30, 0, s30')
        vm.issue(('B', s))
    def aload(t, rt, emit=True):
        if emit:
            r = AF + ((t & 3) * 2 + rt) * 4
            a(f'buffer_load_dwordx4 v[{r}:{r+3}], v5, s[52:55], s33 offen offset:{1024*rt}')
            if rt == 1: a('s_add_u32 s33, s33, %d' % (0x20000 if t % 2 == 0 else 0x60000))
        vm.issue(('A', t))
    def pf(emit=True):
        if not PF: return
        if emit:
            a('s_mov_b64 exec, s[40:41]')
            a('buffer_load_dword v21, v20, s[48:51], s27 offen')
            a('s_mov_b64 exec, -1')
            a('s_add_u32 s27, s27, s28')
            a('s_add_u32 s29, s29, 1')
            a('s_cmp_eq_u32 s29, s24')
            a('s_cselect_b32 s48, s6, s48')
            a('s_cselect_b32 s49, s7, s49')
            a('s_cselect_b32 s50, 0x200000, s50')
            a('s_cselect_b32 s27, 0, s27')
        vm.issue(('P', 0))
    def prologue(emit):
        for q in range(4): dma(q, 0, emit)
        aload(0, 0, emit); aload(0, 1, emit)
        aload(1, 0, emit); aload(1, 1, emit)
        if emit:
            a('s_cmp_eq_u32 s23, 0')
            a('s_cselect_b32 s48, s44, s52')
            a('s_cselect_b32 s49, s45, s53')
            a('s_cselect_b32 s50, s46, s54')
            a('s_mov_b32 s51, 0x00020000')
            a('s_cselect_b32 s24, s26, 99')
            a('s_lshl_b32 s27, s28, 1')
            a('s_mov_b32 s29, 2')
        for q in range(4): dma(q, 1, emit)
        aload(2, 0, emit); aload(2, 1, emit)
        for s in range(2, 2 + PFD): pf(emit)
    NF = 32
    def rd(n, half):
        nb = n % NF
        stg, j, t = nb // 16, (nb // 8) & 1, nb % 8
        off = stg * STG + j * 8192 + half * 4096
        r = BF + (n % 8) * 4 + half * 2
        a(f'ds_read_b64_tr_b16 v[{r}:{r+1}], v{12+t} offset:{off}')
    W = {}
    def body(it, emit):
        def rec(key, tag):
            W[key] = min(W.get(key, 63), vm.need(tag))
        for n in range(NF):
            tt, t = n // 8, n % 8
            st = it * 4 + tt
            nxt = n + LA
            if nxt % 16 == 0:
                s = it * 2 + nxt // 16
                if not emit: rec(('B', n), ('B', s))
                else:
                    a('s_waitcnt vmcnt(%d)' % W[('B', n)])
                    a('s_barrier')
            if emit and nxt >= NF and nxt < NF + 8:
                a(f'v_xor_b32 v{12+nxt-NF}, 0x10000, v{12+nxt-NF}')
            if emit and LA < 8 and n < 8 - LA:
                a(f'v_xor_b32 v{12+LA+n}, 0x10000, v{12+LA+n}')
            if t == 0:
                if not emit: rec(('A', n), ('A', st))
                else: a('s_waitcnt vmcnt(%d) lgkmcnt(%d)' % (W[('A', n)], 2 * (LA - 1)))
            elif emit:
                a('s_waitcnt lgkmcnt(%d)' % (2 * (LA - 1)))
            if emit:
                for rt in range(2):
                    A = AF + ((st & 3) * 2 + rt) * 4
                    B = BF + (n % 8) * 4
                    D = acc(t, rt)
                    a(f'v_mfma_f32_16x16x32_bf16 v[{D}:{D+3}], v[{B}:{B+3}], v[{A}:{A+3}], v[{D}:{D+3}]')
                    rd(n + LA, rt)
            rel = n % 16
            if rel in (0, 3, 6, 9):
                q = (0, 3, 6, 9).index(rel)
                dma(q, it * 2 + n // 16 + 2, emit)
            if t in (1, 4):
                aload(st + 3, 0 if t == 1 else 1, emit)
            if rel == 14: pf(emit)
    prologue(False)
    w0 = vm.need(('B', 0))
    for it in range(9): body(it, False)
    vm.ops = []
    prologue(True)
    for r in range(ACC, ACC + 64):
        a(f'v_mov_b32 v{r}, 0')
    for t in range(LA, 8):
        a(f'v_xor_b32 v{12+t}, 0x10000, v{12+t}')
    a('s_mov_b32 s34, 0')
    if prio:
        a('s_cmp_eq_u32 s23, 0')
        a('s_cbranch_scc1 L_g2_noprio')
        a('s_setprio 1')
        a.label('L_g2_noprio')
    a('s_waitcnt vmcnt(%d)' % w0)
    a('s_barrier')
    stamp(a, 1)
    if gen.STAMP: a('s_waitcnt lgkmcnt(0)')
    for n in range(LA):
        rd(n, 0); rd(n, 1)
    a.raw('.p2align 6')
    a.label('L_g2_loop')
    body(0, True)
    a('s_add_u32 s34, s34, 1')
    a('s_cmp_lt_u32 s34, 9')
    a('s_cbranch_scc1 L_g2_loop')
    stamp(a, 2)
    srd(a, 56, 4, 5, 4 << 20)
    srd(a, 60, 12, 13, 4 << 20)
    srd(a, 64, 10, 11, 2048)
    srd(a, 36, 14, 15, WS2_BYTES)
    a('s_lshl_b32 s25, s42, 5')
    a('s_lshl_b32 s27, s21, 7')
    a('s_add_u32 s27, s27, s43')
    a('s_add_u32 s25, s25, s27')
    a('v_and_b32 v10, 1, v4')
    a('v_lshlrev_b32 v10, 5, v10')
    a('v_lshrrev_b32 v11, 1, v4')
    a('v_lshl_add_u32 v22, v11, 4, v10')
    a('v_lshl_add_u32 v10, v3, 11, v22')
    a('v_add_u32 v10, s25, v10')
    a('v_add_u32 v11, 0x8000, v10')
    a('s_lshl_b32 s28, s35, 1')
    a('s_add_u32 s28, s28, s23')
    a('s_lshl_b32 s28, s28, 2')
    a('s_add_u32 s28, s28, s22')
    a('s_lshl_b32 s29, s28, 13')
    a('s_add_u32 s29, s29, %d' % EX_OFF)
    a('s_add_u32 s30, s29, 4096')
    a('s_lshl_b32 s28, s28, 8')
    a('s_add_u32 s28, s28, %d' % FL_OFF)
    a('v_lshlrev_b32 v23, 4, v1')
    a('s_lshl_b32 s31, s18, 12')
    a('s_add_u32 s31, s31, %d' % (2 * STG))
    a('v_add_u32 v20, s31, v23')
    a('v_xor_b32 v21, 0x4000, v20')
    a('s_waitcnt vmcnt(0) lgkmcnt(0)')
    X = 152; Bb = 168; R = BF
    a('s_cmp_eq_u32 s23, s21')
    a('s_cbranch_scc0 L_g2_nox')
    for rt in range(2):
        for p in range(2):
            r = X + (rt * 2 + p) * 4
            a(f'buffer_load_dwordx4 v[{r}:{r+3}], v{10+rt}, s[56:59], 0 offen offset:{p*64}')
    for p in range(2):
        a(f'buffer_load_dwordx4 v[{Bb+4*p}:{Bb+4*p+3}], v22, s[64:67], s27 offen offset:{p*64}')
    a.label('L_g2_nox')
    a.fence(8)
    for u in range(8):
        c = acc(4, 0) + 4 * u
        a(f'ds_write_b128 v20, v[{c}:{c+3}] offset:{(u>>2)*STG + (u&3)*1024}')
    a('s_waitcnt lgkmcnt(0)')
    a('s_barrier')
    for u in range(8):
        a(f'ds_read_b128 v[{R+4*u}:{R+4*u+3}], v21 offset:{(u>>2)*STG + (u&3)*1024}')
    for u in range(8):
        a(f's_waitcnt lgkmcnt({7-u})')
        for r in range(4):
            a(f'v_add_f32 v{ACC+4*u+r}, v{ACC+4*u+r}, v{R+4*u+r}')
    stamp(a, 3)
    a('s_cmp_eq_u32 s23, s21')
    a('s_cbranch_scc1 L_g2_recv')
    for u in range(8):
        a(f'buffer_store_dwordx4 v[{ACC+4*u}:{ACC+4*u+3}], v23, s[36:39], s{29 + (u>>2)} offen offset:{(u&3)*1024} sc1')
    a('v_mov_b32 v1, 1')
    a('v_mov_b32 v2, 0')
    a('s_waitcnt vmcnt(0)')
    a('s_mov_b64 exec, 1')
    a('buffer_store_dword v1, v2, s[36:39], s28 offen sc1')
    stamp(a, 4)
    stamp_final(a, 5, 3, 14, 8)
    a('s_endpgm')
    a.label('L_g2_recv')
    a.hist = []
    a('v_mov_b32 v2, 0')
    a('s_mov_b32 s34, 0')
    a.label('L_g2_poll')
    a('buffer_load_dword v1, v2, s[36:39], s28 offen sc1')
    a('s_add_u32 s34, s34, 1')
    a('s_waitcnt vmcnt(0)')
    a('v_readfirstlane_b32 s31, v1')
    a('s_cmp_gt_u32 s34, 200000')
    a('s_cbranch_scc1 L_g2_go')
    a('s_cmp_eq_u32 s31, 0')
    a('s_cbranch_scc1 L_g2_poll')
    a.label('L_g2_go')
    stamp(a, 4)
    for u in range(8):
        a(f'buffer_load_dwordx4 v[{R+4*u}:{R+4*u+3}], v23, s[36:39], s{29 + (u>>2)} offen offset:{(u&3)*1024} sc1')
    T = 176
    for p in range(2):
        for d in range(4):
            for rt in range(2):
                xr = X + (rt * 2 + p) * 4 + d
                o = T + (rt * 2 + p) * 8 + 2 * d
                a(f'v_lshlrev_b32 v{o}, 16, v{xr}')
                a(f'v_and_b32 v{o+1}, 0xffff0000, v{xr}')
            a(f'v_lshlrev_b32 v1, 16, v{Bb+4*p+d}')
            a(f'v_and_b32 v2, 0xffff0000, v{Bb+4*p+d}')
            for rt in range(2):
                o = T + (rt * 2 + p) * 8 + 2 * d
                a(f'v_add_f32 v{o}, v{o}, v1')
                a(f'v_add_f32 v{o+1}, v{o+1}, v2')
    for p in range(2):
        a(f's_waitcnt vmcnt({4 - 4*p if p == 0 else 2})')
        for rt in range(2):
            c0, c1 = acc(2 * p, rt), acc(2 * p + 1, rt)
            u0, u1 = (2 * p) * 2 + rt, (2 * p + 1) * 2 + rt
            for r in range(4):
                a(f'v_add_f32 v{c0+r}, v{c0+r}, v{R+4*u0+r}')
                a(f'v_add_f32 v{c1+r}, v{c1+r}, v{R+4*u1+r}')
            for r in range(4):
                a(f'v_permlane16_swap_b32 v{c0+r}, v{c1+r}')
            o = T + (rt * 2 + p) * 8
            for r in range(4):
                a(f'v_add_f32 v{c0+r}, v{c0+r}, v{o+r}')
                a(f'v_add_f32 v{c1+r}, v{c1+r}, v{o+4+r}')
            xr = X + (rt * 2 + p) * 4
            a(f'v_cvt_pk_bf16_f32 v{xr}, v{c0}, v{c0+1}')
            a(f'v_cvt_pk_bf16_f32 v{xr+1}, v{c0+2}, v{c0+3}')
            a(f'v_cvt_pk_bf16_f32 v{xr+2}, v{c1}, v{c1+1}')
            a(f'v_cvt_pk_bf16_f32 v{xr+3}, v{c1+2}, v{c1+3}')
            a(f'buffer_store_dwordx4 v[{xr}:{xr+3}], v{10+rt}, s[60:63], 0 offen offset:{p*64}')
    stamp_final(a, 5, 3, 14, 8)
    a.label('L_g2_done')
    a('s_endpgm')
    return name, '(256,1,1)', '(512,1,1)', LDS, kdesc(name, 208, 96)

def gen_lnv2(a, PFK=512):
    name = 'ln_kernel'
    kstart(a, name)
    a('s_cmp_ge_u32 s2, 256')
    a('s_cbranch_scc1 L_ln_done')
    a('s_cmp_ge_u32 s2, 128')
    a('s_cbranch_scc1 L_ln_pf')
    a('s_load_dwordx2 s[4:5], s[0:1], 0')
    a('s_load_dwordx2 s[6:7], s[0:1], 88')
    a('v_and_b32 v1, 63, v0')
    a('v_lshrrev_b32 v2, 6, v0')
    a('v_and_b32 v3, 15, v1')
    a('v_lshrrev_b32 v4, 4, v1')
    a('s_lshl_b32 s3, s2, 15')
    a('v_lshlrev_b32 v5, 11, v3')
    a('v_lshl_add_u32 v5, v2, 8, v5')
    a('v_lshl_add_u32 v5, v4, 4, v5')
    a('v_add_u32 v5, s3, v5')
    a('s_waitcnt lgkmcnt(0)')
    srd(a, 8, 4, 5, 4 << 20)
    srd(a, 12, 6, 7, 4 << 20)
    for c in range(4):
        a(f'buffer_load_dwordx4 v[{8+4*c}:{11+4*c}], v5, s[8:11], 0 offen offset:{64*c}')
    a('v_lshlrev_b32 v6, 19, v2')
    a('v_lshl_add_u32 v6, v1, 4, v6')
    a('s_lshl_b32 s3, s2, 10')
    a('v_add_u32 v6, s3, v6')
    a('v_lshlrev_b32 v7, 5, v3')
    a('v_lshl_add_u32 v60, v2, 2, v7')
    a('s_waitcnt vmcnt(0)')
    F = 24
    for d in range(16):
        a(f'v_lshlrev_b32 v{F+2*d}, 16, v{8+d}')
        a(f'v_and_b32 v{F+2*d+1}, 0xffff0000, v{8+d}')
    a(f'v_add_f32 v56, v{F}, v{F+1}')
    a(f'v_add_f32 v57, v{F+2}, v{F+3}')
    for e in range(4, 32, 2):
        a(f'v_add_f32 v56, v56, v{F+e}')
        a(f'v_add_f32 v57, v57, v{F+e+1}')
    a('v_add_f32 v56, v56, v57')
    xreduce(a, 'v_add_f32', 56, 57)
    a('ds_write_b32 v60, v56')
    a('s_waitcnt lgkmcnt(0)')
    a('s_barrier')
    a('ds_read_b128 v[8:11], v7')
    a('ds_read_b128 v[12:15], v7 offset:16')
    a('s_waitcnt lgkmcnt(0)')
    for e in range(9, 16):
        a(f'v_add_f32 v8, v8, v{e}')
    a('v_mul_f32 v58, 0x3a800000, v8')
    a(f'v_sub_f32 v8, v{F}, v58')
    a(f'v_mul_f32 v56, v8, v8')
    a(f'v_sub_f32 v9, v{F+1}, v58')
    a(f'v_mul_f32 v57, v9, v9')
    for e in range(2, 32, 2):
        a(f'v_sub_f32 v8, v{F+e}, v58')
        a(f'v_sub_f32 v9, v{F+e+1}, v58')
        a(f'v_fmac_f32 v56, v8, v8')
        a(f'v_fmac_f32 v57, v9, v9')
    a('v_add_f32 v56, v56, v57')
    xreduce(a, 'v_add_f32', 56, 57)
    a('ds_write_b32 v60, v56 offset:512')
    a('s_waitcnt lgkmcnt(0)')
    a('s_barrier')
    a('ds_read_b128 v[8:11], v7 offset:512')
    a('ds_read_b128 v[12:15], v7 offset:528')
    a('s_waitcnt lgkmcnt(0)')
    for e in range(9, 16):
        a(f'v_add_f32 v8, v8, v{e}')
    a('v_mul_f32 v59, 0x3a800000, v8')
    round_bf16(a, 58)
    round_bf16(a, 59)
    a('v_add_f32 v59, 0x3727c5ac, v59')
    round_bf16(a, 59)
    a('v_sqrt_f32 v59, v59')
    round_bf16(a, 59)
    a('v_rcp_f32 v59, v59')
    for d in range(16):
        a(f'v_sub_f32 v{F+2*d}, v{F+2*d}, v58')
        a(f'v_sub_f32 v{F+2*d+1}, v{F+2*d+1}, v58')
        a(f'v_cvt_pk_bf16_f32 v{8+d}, v{F+2*d}, v{F+2*d+1}')
        a(f'v_lshlrev_b32 v{F+2*d}, 16, v{8+d}')
        a(f'v_and_b32 v{F+2*d+1}, 0xffff0000, v{8+d}')
        a(f'v_mul_f32 v{F+2*d}, v{F+2*d}, v59')
        a(f'v_mul_f32 v{F+2*d+1}, v{F+2*d+1}, v59')
        a(f'v_cvt_pk_bf16_f32 v{8+d}, v{F+2*d}, v{F+2*d+1}')
    a('s_mov_b32 s16, 0x20000')
    a('s_mov_b32 s17, 0x40000')
    a('s_mov_b32 s18, 0x60000')
    a('buffer_store_dwordx4 v[8:11], v6, s[12:15], 0 offen')
    a('buffer_store_dwordx4 v[12:15], v6, s[12:15], s16 offen')
    a('buffer_store_dwordx4 v[16:19], v6, s[12:15], s17 offen')
    a('buffer_store_dwordx4 v[20:23], v6, s[12:15], s18 offen')
    a('s_endpgm')
    a.label('L_ln_pf')
    a.hist = []
    a('s_load_dwordx2 s[4:5], s[0:1], 8')
    a('s_load_dwordx2 s[6:7], s[0:1], 40')
    a('s_load_dwordx2 s[8:9], s[0:1], 88')
    a('s_and_b32 s20, s2, 7')
    a('s_bfe_u32 s21, s2, 0x40003')
    a('v_lshrrev_b32 v1, 4, v0')
    a('v_and_b32 v2, 15, v0')
    a('s_lshl_b32 s22, s21, 5')
    a('v_add_u32 v1, s22, v1')
    a('s_movk_i32 s23, 6144')
    a('v_mul_lo_u32 v3, v1, s23')
    a('v_lshrrev_b32 v4, 1, v2')
    a('v_lshl_add_u32 v3, v4, 11, v3')
    a('v_and_b32 v4, 1, v2')
    a('v_lshl_add_u32 v3, v4, 7, v3')
    a('s_lshl_b32 s24, s20, 8')
    a('v_add_u32 v3, s24, v3')
    a('v_mov_b32 v6, 0x7fffffff')
    a('v_cmp_gt_u32 vcc, 6, v2')
    a('v_cndmask_b32 v3, v6, v3, vcc')
    a('s_movk_i32 s23, 7168')
    a('v_mul_lo_u32 v5, v1, s23')
    a('v_lshl_add_u32 v5, v2, 7, v5')
    a('s_mul_i32 s24, s20, 896')
    a('s_sub_u32 s24, s24, 1024')
    a('v_add_u32 v5, s24, v5')
    a('v_cmp_gt_u32 vcc, 15, v2')
    a('v_cndmask_b32 v5, v6, v5, vcc')
    a('v_cmp_lt_u32 vcc, 7, v2')
    a('v_cndmask_b32 v5, v6, v5, vcc')
    a('s_sub_u32 s25, s2, 128')
    a('s_mul_i32 s25, s25, %d' % (FL_BYTES // 128))
    a('v_lshlrev_b32 v7, 8, v0')
    a('v_cmp_gt_u32 vcc, %d, v7' % (FL_BYTES // 128))
    a('v_cndmask_b32 v7, v6, v7, vcc')
    a('v_mov_b32 v8, 0')
    a('s_waitcnt lgkmcnt(0)')
    srd(a, 12, 4, 5, 1024 * 6144)
    srd(a, 16, 6, 7, 1024 * 7168)
    srd_off(a, 28, 8, 9, FL_OFF, FL_BYTES)
    a('buffer_store_dword v8, v7, s[28:31], s25 offen')
    for ps in range(PFK // 512):
        a('s_mov_b32 s26, %d' % (ps * 512 * 6144))
        a('s_mov_b32 s27, %d' % (ps * 512 * 7168))
        a(f'buffer_load_dword v{10+2*ps}, v3, s[12:15], s26 offen')
        a(f'buffer_load_dword v{11+2*ps}, v5, s[16:19], s27 offen')
    a('s_waitcnt vmcnt(0)')
    a.label('L_ln_done')
    a('s_endpgm')
    return name, '(256,1,1)', '(512,1,1)', 1024, kdesc(name, 64, 32)

if __name__ == '__main__':
    path = sys.argv[1] if len(sys.argv) > 1 else 'v2.s'
    if '--stamp' in sys.argv: gen.STAMP = True
    kw = {}
    for x in sys.argv[2:]:
        if '=' in x:
            k, v = x.split('='); kw[k] = eval(v)
    g2kw = {k[3:]: v for k, v in kw.items() if k.startswith('g2_')}
    lnkw = {k[3:]: v for k, v in kw.items() if k.startswith('ln_')}
    build(path, [lambda a: gen_lnv2(a, **lnkw), gen_g1, gen_o, lambda a: gen_g2v2(a, **g2kw)])
```

```python
import sys
from asmlib import *
import gen
from gen import *
from gen2 import *

CNT_OFF = FL_OFF + 262144

def interleave(a, streams, weights=None):
    idx = [0] * len(streams)
    tot = [len(s) for s in streams]
    n = sum(tot)
    for _ in range(n):
        best = min((i for i in range(len(streams)) if idx[i] < tot[i]), key=lambda i: (idx[i] + 0.5) / tot[i])
        a(streams[best][idx[best]])
        idx[best] += 1

class L(list):
    def __call__(self, t): self.append(t)

def butterfly4(o, op, A0, A1, B0, B1, T, post):
    o(f'v_permlane32_swap_b32 v{A0}, v{B0}')
    o(f'v_permlane32_swap_b32 v{A1}, v{B1}')
    o(f'{op} v{A0}, v{A0}, v{B0}')
    o(f'{op} v{A1}, v{A1}, v{B1}')
    o(f'v_permlane16_swap_b32 v{A0}, v{A1}')
    o(f'{op} v{A0}, v{A0}, v{A1}')
    post(A0)
    o(f'v_mov_b32 v{A1}, v{A0}')
    o(f'v_permlane16_swap_b32 v{A0}, v{A1}')
    o(f'v_mov_b32 v{B0}, v{A0}')
    o(f'v_mov_b32 v{B1}, v{A1}')
    o(f'v_permlane32_swap_b32 v{A0}, v{B0}')
    o(f'v_permlane32_swap_b32 v{A1}, v{B1}')

def softmax_pair(o, C, WP, R):
    P = [R, R + 8]; E = [R + 16, R + 24]; Q = R + 32
    PK = [Q, Q + 4]
    for rt in range(2):
        c0, c1 = C[rt]
        o(f'v_cvt_pk_bf16_f32 v{PK[rt]}, v{c0}, v{c0+1}')
        o(f'v_cvt_pk_bf16_f32 v{PK[rt]+1}, v{c0+2}, v{c0+3}')
        o(f'v_cvt_pk_bf16_f32 v{PK[rt]+2}, v{c1}, v{c1+1}')
        o(f'v_cvt_pk_bf16_f32 v{PK[rt]+3}, v{c1+2}, v{c1+3}')
    for rt in range(2):
        for ft in range(2):
            o(f'v_mfma_f32_16x16x32_bf16 v[{P[rt]+4*ft}:{P[rt]+4*ft+3}], v[{WP+4*ft}:{WP+4*ft+3}], v[{PK[rt]}:{PK[rt]+3}], 0')
    for rt in range(2):
        for j in range(0, 8, 2):
            o(f'v_cvt_pk_bf16_f32 v{E[rt]+j}, v{P[rt]+j}, v{P[rt]+j+1}')
    for rt in range(2):
        for j in range(0, 8, 2):
            o(f'v_lshlrev_b32 v{P[rt]+j}, 16, v{E[rt]+j}')
            o(f'v_and_b32 v{P[rt]+j+1}, 0xffff0000, v{E[rt]+j}')
    mx = [Q, Q + 2]; nm = [Q + 1, Q + 3]
    for rt in range(2):
        p = P[rt]
        o(f'v_max3_f32 v{mx[rt]}, v{p}, v{p+1}, v{p+2}')
        o(f'v_max3_f32 v{nm[rt]}, -v{p}, -v{p+1}, -v{p+2}')
    for (x, y) in ((3, 4), (5, 6)):
        for rt in range(2):
            p = P[rt]
            o(f'v_max3_f32 v{mx[rt]}, v{mx[rt]}, v{p+x}, v{p+y}')
            o(f'v_max3_f32 v{nm[rt]}, v{nm[rt]}, -v{p+x}, -v{p+y}')
    for rt in range(2):
        p = P[rt]
        o(f'v_max_f32 v{mx[rt]}, v{mx[rt]}, v{p+7}')
        o(f'v_max_f32_e64 v{nm[rt]}, v{nm[rt]}, -v{p+7}')
    butterfly4(o, 'v_max_f32', mx[0], nm[0], mx[1], nm[1], None, lambda r: o(f'v_mul_f32 v{r}, 0xbfb8aa3b, v{r}'))
    for j in range(8):
        for rt in range(2):
            o(f'v_fmamk_f32 v{E[rt]+j}, v{P[rt]+j}, 0x3fb8aa3b, v{mx[rt]}')
            o(f'v_fmamk_f32 v{P[rt]+j}, v{P[rt]+j}, 0xbfb8aa3b, v{nm[rt]}')
    for j in range(8):
        for rt in range(2):
            o(f'v_exp_f32 v{E[rt]+j}, v{E[rt]+j}')
            o(f'v_exp_f32 v{P[rt]+j}, v{P[rt]+j}')
    for rt in range(2):
        o(f'v_add_f32 v{mx[rt]}, v{E[rt]}, v{E[rt]+1}')
        o(f'v_add_f32 v{nm[rt]}, v{P[rt]}, v{P[rt]+1}')
    for j in range(2, 8):
        for rt in range(2):
            o(f'v_add_f32 v{mx[rt]}, v{mx[rt]}, v{E[rt]+j}')
            o(f'v_add_f32 v{nm[rt]}, v{nm[rt]}, v{P[rt]+j}')
    butterfly4(o, 'v_add_f32', mx[0], nm[0], mx[1], nm[1], None, lambda r: o(f'v_rcp_f32 v{r}, v{r}'))
    for j in range(8):
        for rt in range(2):
            o(f'v_mul_f32 v{E[rt]+j}, v{E[rt]+j}, v{mx[rt]}')
            o(f'v_mul_f32 v{P[rt]+j}, v{P[rt]+j}, v{nm[rt]}')
    for j in range(4):
        for rt in range(2):
            o(f'v_cvt_pk_bf16_f32 v{E[rt]+j}, v{E[rt]+2*j}, v{E[rt]+2*j+1}')
            o(f'v_cvt_pk_bf16_f32 v{P[rt]+j}, v{P[rt]+2*j}, v{P[rt]+2*j+1}')
    return E, P

def gen_g1v2(a, NS=6, LA=6, stagger=False, prio=False, STAGE=True, hsc1=False, dbgpq=False, dbl=False, diag=''):
    name = 'g1_kernel'
    STG = 26624
    RG = 3328
    PD = NS - 2
    WPHI_LDS = NS * STG
    LDS = NS * STG + 2048
    ACC = 24; BF = 128; AF = 180
    def acc(ct, rt): return ACC + (ct * 2 + rt) * 4
    kstart(a, name)
    a('s_cmp_ge_u32 s2, 256')
    a('s_cbranch_scc1 L_g1_done')
    stamp_start(a)
    a('s_load_dwordx4 s[4:7], s[0:1], 8')
    a('s_load_dwordx4 s[8:11], s[0:1], 40')
    a('s_load_dwordx2 s[12:13], s[0:1], 88')
    a('s_load_dwordx2 s[96:97], s[0:1], 24')
    a('s_load_dwordx2 s[98:99], s[0:1], 56')
    a('s_and_b32 s14, s2, 7')
    a('s_lshr_b32 s15, s2, 3')
    a('s_and_b32 s16, s15, 7')
    a('s_lshr_b32 s15, s15, 3')
    a('s_lshl_b32 s14, s14, 2')
    a('s_add_u32 s17, s14, s15')
    a('v_and_b32 v1, 63, v0')
    a('v_lshrrev_b32 v2, 6, v0')
    a('v_readfirstlane_b32 s18, v2')
    a('v_and_b32 v3, 15, v1')
    a('v_lshrrev_b32 v4, 4, v1')
    a('s_lshl_b32 s19, s16, 14')
    a('s_lshl_b32 s20, s18, 11')
    a('s_add_u32 s19, s19, s20')
    a('v_lshlrev_b32 v5, 4, v1')
    a('v_add_u32 v5, s19, v5')
    def k_of(rr, out, t):
        a(f's_and_b32 s20, s18, 3')
        a(f's_lshl_b32 s20, s20, 3')
        a(f'v_add_u32 v{t}, s20, v{rr}')
        a(f'v_bfe_u32 v{out}, v{t}, 2, 2')
        a(f'v_lshlrev_b32 v{out}, 3, v{out}')
        a(f'v_and_b32 v20, 3, v{t}')
        a(f'v_add_u32 v{out}, v{out}, v20')
        a(f'v_lshrrev_b32 v20, 4, v{t}')
        a(f'v_lshl_add_u32 v{out}, v20, 2, v{out}')
        a(f's_lshr_b32 s20, s18, 2')
        a(f's_lshl_b32 s20, s20, 5')
        a(f'v_add_u32 v{out}, s20, v{out}')
    a('v_bfe_u32 v10, v1, 2, 3')
    k_of(10, 11, 12)
    a('s_movk_i32 s21, 6144')
    a('v_mul_lo_u32 v6, v11, s21')
    a('v_bfe_u32 v12, v1, 1, 1')
    a('v_lshrrev_b32 v13, 2, v10')
    a('v_xor_b32 v12, v12, v13')
    a('v_lshl_add_u32 v6, v12, 5, v6')
    a('v_and_b32 v12, 1, v1')
    a('v_lshl_add_u32 v6, v12, 4, v6')
    a('v_lshrrev_b32 v12, 5, v1')
    a('v_lshl_add_u32 v6, v12, 11, v6')
    a('s_lshl_b32 s20, s17, 6')
    a('v_add_u32 v6, s20, v6')
    a('s_lshr_b32 s22, s17, 1')
    a('s_and_b32 s23, s17, 1')
    a('s_mul_i32 s24, s22, 448')
    a('s_mul_i32 s25, s23, 192')
    a('s_add_u32 s25, s25, s24')
    a('s_lshl_b32 s26, s23, 5')
    a('s_add_u32 s26, s26, s24')
    a('s_add_u32 s26, s26, 192')
    for (dst, add) in ((7, 0), (8, 64)):
        a(f'v_add_u32 v10, {add}, v1')
        a('v_mul_u32_u24 v12, 0x124a, v10')
        a('v_lshrrev_b32 v12, 16, v12')
        a('v_mul_u32_u24 v13, 14, v12')
        a('v_sub_u32 v13, v10, v13')
        k_of(12, 11, 14)
        a('s_movk_i32 s21, 7168')
        a(f'v_mul_lo_u32 v{dst}, v11, s21')
        a(f'v_lshl_add_u32 v{dst}, v13, 4, v{dst}')
        a('v_mov_b32 v14, s25')
        a('v_mov_b32 v15, s26')
        a('v_cmp_gt_u32 vcc, 12, v13')
        a('v_cndmask_b32 v14, v15, v14, vcc')
        a(f'v_add_u32 v{dst}, v{dst}, v14')
    a('s_mul_i32 s27, s18, 3328')
    a('s_mov_b32 s30, 0')
    a('s_mov_b32 s31, 0')
    a('s_mov_b32 s32, s27')
    a('s_mov_b32 s33, 0')
    a('s_mov_b32 s36, 0xffffffff')
    a('s_mov_b32 s37, 0')
    a('s_mov_b32 s38, 0xffffffff')
    a('s_mov_b32 s39, 0x0000ffff')
    a('s_mov_b64 s[68:69], -1')
    a('s_mov_b32 s28, 0')
    a('v_lshlrev_b32 v10, 3, v4')
    a('s_waitcnt lgkmcnt(0)')
    srd(a, 44, 4, 5, 1024 * 6144)
    srd(a, 48, 8, 9, 1024 * 7168)
    srd(a, 52, 12, 13, 4 << 20)
    srd(a, 64, 10, 11, 7168)
    vm = VM()
    def dma(part, s, emit=True):
        if emit:
            if part == 0:
                a('s_mov_b32 m0, s32')
                a('s_mov_b64 exec, s[68:69]')
                a('buffer_load_dwordx4 v6, s[44:47], s30 offen lds')
                a('s_mov_b64 exec, -1')
            elif part == 1:
                a('s_add_u32 m0, s32, 1024')
                a('s_add_u32 s41, s30, 4096')
                a('s_mov_b64 exec, s[36:37]')
                a('buffer_load_dwordx4 v6, s[44:47], s41 offen lds')
                a('s_mov_b64 exec, -1')
            elif part == 2:
                a('s_add_u32 m0, s32, 1536')
                a('s_mov_b64 exec, s[68:69]')
                a('buffer_load_dwordx4 v7, s[48:51], s31 offen lds')
                a('s_mov_b64 exec, -1')
            else:
                a('s_add_u32 m0, s32, 2560')
                a('s_mov_b64 exec, s[38:39]')
                a('buffer_load_dwordx4 v8, s[48:51], s31 offen lds')
                a('s_mov_b64 exec, -1')
                a('s_add_u32 s30, s30, %d' % (64 * 6144))
                a('s_add_u32 s31, s31, %d' % (64 * 7168))
                a('s_add_u32 s32, s32, %d' % STG)
                a('s_cmp_ge_u32 s32, %d' % (NS * STG))
                a('s_cselect_b32 s41, %d, 0' % (NS * STG))
                a('s_sub_u32 s32, s32, s41')
                a('s_add_u32 s28, s28, 1')
                a('s_cmp_ge_u32 s28, 16')
                a('s_cselect_b64 s[36:37], 0, s[36:37]')
                a('s_cselect_b64 s[38:39], 0, s[38:39]')
                a('s_cselect_b64 s[68:69], 0, s[68:69]')
        vm.issue(('B', s))
    def aload(t, rt, emit=True):
        if emit:
            r = AF + ((t & 3) * 2 + rt) * 4
            a(f'buffer_load_dwordx4 v[{r}:{r+3}], v5, s[52:55], s33 offen offset:{1024*rt}')
            if rt == 1: a('s_add_u32 s33, s33, 0x20000')
        vm.issue(('A', t))
    def pf(emit=True):
        if not STAGE: return
        if emit:
            a('s_mov_b64 exec, s[42:43]')
            a('buffer_load_dword v19, v9, s[60:63], s29 offen')
            a('s_mov_b64 exec, -1')
            a('s_add_u32 s29, s29, s40')
        vm.issue(('P', 0))
    BIAS = 212
    def prologue(emit):
        for p in range(4): dma(p, 0, emit)
        aload(0, 0, emit); aload(0, 1, emit)
        if emit:
            for i in range(6):
                a(f'buffer_load_dwordx2 v[{BIAS+2*i}:{BIAS+2*i+1}], v10, s[64:67], s25 offen offset:{32*i}')
            a(f'buffer_load_dwordx2 v[{BIAS+12}:{BIAS+13}], v10, s[64:67], s26 offen offset:192')
        for i in range(7): vm.issue(('BI', 0))
        aload(1, 0, emit); aload(1, 1, emit)

    def rd(n, half):
        nb = n % 52
        tt, ct = nb // 13, nb % 13
        stg, kk = tt >> 1, tt & 1
        off = stg * STG + kk * 4 * RG + half * 2 * RG
        if ct < 6:
            base = 21 + (ct & 1); off += (ct >> 1) * 512
        else:
            base = 23; off += (ct - 6) * 32
        r = BF + ct * 4 + half * 2
        a(f'ds_read_b64_tr_b16 v[{r}:{r+1}], v{base} offset:{off}')

    def first_sched():
        ops = []
        ops += [('B', 1, p) for p in range(4)] + [('A', 2, 0), ('A', 2, 1), ('W',)]
        ops += [('B', 2, p) for p in range(4)] + [('A', 3, 0), ('A', 3, 1)]
        rest = []
        for s in range(3, 2 + PD): rest += [('B', s, p) for p in range(4)]
        S = {}
        n = 0
        for o in ops:
            S.setdefault(n, []).append(o); n += 1
        for t, n0 in ((4, 14), (5, 27), (6, 40)):
            S.setdefault(n0, []).append(('A', t, 0)); S.setdefault(n0 + 2, []).append(('A', t, 1))
        free = [x for x in range(13, 52) if x not in S]
        step = len(free) / max(1, len(rest))
        for i, o in enumerate(rest):
            S.setdefault(free[int(i * step)], []).append(o)
        return S
    def body(it, emit, W, bar, first=False):
        S = first_sched() if first else None
        def rec(key, tag):
            W[key] = min(W.get(key, 63), vm.need(tag))
        for n in range(52):
            tt, ct = n // 13, n % 13
            t = it * 4 + tt
            nxt = n + LA
            if (n + bar) % 26 == 0:
                s = it * 2 + (n + bar) // 26
                if not emit:
                    if s < 16: rec(('B', n), ('B', s))
                else:
                    if 'w' not in diag: a('s_waitcnt vmcnt(%d)' % W[('B', n)])
                    if 'b' not in diag: a('s_barrier')
            if nxt == 52 and emit:
                a('s_add_u32 s35, s35, %d' % (2 * STG))
                a('s_cmp_ge_u32 s35, %d' % (NS * STG))
                a('s_cselect_b32 s35, 0, s35')
                a('v_add_u32 v21, s35, v16')
                a('v_add_u32 v22, s35, v17')
                a('v_add_u32 v23, s35, v18')
            if ct == 0:
                if not emit: rec(('A', n), ('A', t))
                else: a('s_waitcnt vmcnt(%d) lgkmcnt(%d)' % (63 if 'w' in diag else W[('A', n)], 2 * (LA - 1)))
            elif emit:
                a('s_waitcnt lgkmcnt(%d)' % (2 * (LA - 1)))
            if emit:
                for rt in range(2):
                    A = AF + ((t & 3) * 2 + rt) * 4
                    B = BF + ct * 4
                    D = acc(ct, rt)
                    if ct in (4, 5):
                        a(f'v_mfma_f32_16x16x32_bf16 v[{D}:{D+3}], v[{A}:{A+3}], v[{B}:{B+3}], v[{D}:{D+3}]')
                    else:
                        a(f'v_mfma_f32_16x16x32_bf16 v[{D}:{D+3}], v[{B}:{B+3}], v[{A}:{A+3}], v[{D}:{D+3}]')
                    if 'l' not in diag: rd(n + LA, rt)
            if first:
                for o in S.get(n, []):
                    if o[0] == 'B': dma(o[2], o[1], emit)
                    elif o[0] == 'A': aload(o[1], o[2], emit)
                    else:
                        if emit:
                            a('s_and_b32 s41, s18, 1')
                            a('s_lshl_b32 s41, s41, 10')
                            a('s_add_u32 m0, s41, %d' % WPHI_LDS)
                            a('s_lshl_b32 s21, s17, 11')
                            a('s_add_u32 s21, s21, s41')
                            a('buffer_load_dwordx4 v11, s[56:59], s21 offen lds')
                        vm.issue(('W', 0))
                if n in (25, 51): pf(emit)
            else:
                rel = n % 26
                if rel in (0, 5, 10, 15):
                    p = (0, 5, 10, 15).index(rel)
                    dma(p, it * 2 + n // 26 + PD, emit and 'd' not in diag)
                if ct in (2, 8):
                    aload(t + 3, 0 if ct == 2 else 1, emit and 'a' not in diag)
                if rel == 9: pf(emit)
    prologue(False)
    w0 = vm.need(('BI', 0))
    vm0 = list(vm.ops)
    groups = [LA + 13, LA] if stagger else [LA]
    Ws = []
    for bar in groups:
        vm.ops = list(vm0)
        W1 = {}; W = {}
        body(0, False, W1, bar, True)
        for it in range(1, 8): body(it, False, W, bar)
        Ws.append((W1, W))
    vm.ops = []
    prologue(True)
    a('v_lshrrev_b32 v10, 5, v1')
    a('v_mul_u32_u24 v10, 3328, v10')
    a('v_bfe_u32 v11, v1, 2, 3')
    a('v_and_b32 v12, 3, v1')
    a('v_lshl_add_u32 v10, v12, 3, v10')
    a('v_lshl_add_u32 v16, v11, 6, v10')
    a('v_bfe_u32 v12, v1, 4, 1')
    a('v_lshl_add_u32 v16, v12, 5, v16')
    a('v_xor_b32 v17, 32, v16')
    a('v_mul_u32_u24 v11, 224, v11')
    a('v_add_u32 v18, v10, v11')
    a('v_add_u32 v18, 1536, v18')
    a('v_lshlrev_b32 v11, 4, v1')
    srd(a, 56, 6, 7, 65536)
    a('s_mul_i32 s20, s2, 224')
    a('s_lshl_b32 s21, s18, 5')
    a('s_add_u32 s20, s20, s21')
    a('s_lshl_b32 s21, s2, 6')
    a('s_cmp_eq_u32 s18, 7')
    a('s_cselect_b32 s29, s21, s20')
    a('s_lshl_b32 s29, s29, 7')
    a('s_cmp_eq_u32 s18, 7')
    a('s_cselect_b32 s60, s96, s98')
    a('s_cselect_b32 s61, s97, s99')
    a('s_mov_b32 s62, %d' % (3584 * 2048))
    a('s_cselect_b32 s62, 0x200000, s62')
    a('s_mov_b32 s63, 0x00020000')
    a('s_cselect_b32 s42, 15, 3')
    a('s_mov_b32 s43, 0')
    a('s_movk_i32 s40, 256')
    a('s_cselect_b32 s40, 512, s40')
    a('v_lshlrev_b32 v9, 7, v1')
    for r in range(ACC, ACC + 48):
        a(f'v_mov_b32 v{r}, 0')
    a('v_mov_b32 v21, v16')
    a('v_mov_b32 v22, v17')
    a('v_mov_b32 v23, v18')
    a('s_mov_b32 s35, 0')
    a('s_mov_b32 s34, 1')
    a('s_waitcnt vmcnt(%d)' % w0)
    a('s_barrier')
    stamp(a, 1)
    if gen.STAMP: a('s_waitcnt lgkmcnt(0)')
    for n in range(LA):
        rd(n, 0); rd(n, 1)
    for i in range(7):
        for h in range(2):
            for rt in range(2):
                c = acc(6 + i, rt)
                a(f'v_lshlrev_b32 v{c+2*h}, 16, v{BIAS+2*i+h}')
                a(f'v_and_b32 v{c+2*h+1}, 0xffff0000, v{BIAS+2*i+h}')
    if stagger or prio:
        a('s_cmp_lt_u32 s18, 4')
        a('s_cbranch_scc1 L_g1_grp1')
        if prio: a('s_setprio 1')
        if not stagger: a.label('L_g1_grp1')
    for gi, bar in enumerate(groups):
        if gi == 1:
            a.label('L_g1_grp1')
            a.hist = []
        W1, W = Ws[gi]
        body(0, True, W1, bar, True)
        a.raw('.p2align 6')
        a.label(f'L_g1_loop{gi}')
        body(1, True, W, bar)
        a('s_add_u32 s34, s34, 1')
        a('s_cmp_lt_u32 s34, 8')
        a(f's_cbranch_scc1 L_g1_loop{gi}')
        if gi == 0 and len(groups) > 1:
            a('s_branch L_g1_epi')
    a.label('L_g1_epi')
    stamp(a, 2)
    WP = 212
    a('v_lshrrev_b32 v10, 2, v1')
    a('v_lshlrev_b32 v10, 6, v10')
    a('v_and_b32 v12, 3, v1')
    a('v_lshl_add_u32 v10, v12, 3, v10')
    a('v_add_u32 v10, %d, v10' % WPHI_LDS)
    a('s_waitcnt lgkmcnt(0)')
    for ft in range(2):
        for half in range(2):
            a(f'ds_read_b64_tr_b16 v[{WP+ft*4+half*2}:{WP+ft*4+half*2+1}], v10 offset:{half*1024+ft*32}')
    srd(a, 56, 12, 13, WS2_BYTES)
    a('s_mul_i32 s42, s18, 6144')
    a('v_lshlrev_b32 v12, 5, v3')
    a('v_lshl_add_u32 v12, v4, 3, v12')
    a('v_add_u32 v12, s42, v12')
    a('v_add_u32 v13, s42, v11')
    VK = 220
    for dt in range(2):
        c0, c1 = acc(4 + dt, 0), acc(4 + dt, 1)
        a(f'v_cvt_pk_bf16_f32 v{VK+4*dt}, v{c0}, v{c0+1}')
        a(f'v_cvt_pk_bf16_f32 v{VK+4*dt+1}, v{c0+2}, v{c0+3}')
        a(f'v_cvt_pk_bf16_f32 v{VK+4*dt+2}, v{c1}, v{c1+1}')
        a(f'v_cvt_pk_bf16_f32 v{VK+4*dt+3}, v{c1+2}, v{c1+3}')
        a(f'ds_write_b128 v13, v[{VK+4*dt}:{VK+4*dt+3}] offset:{4096+dt*1024}')
    a('s_waitcnt lgkmcnt(2)')
    if dbl:
        a('s_mov_b32 s34, 0')
        a.label('L_g1_dbl')
        stamp(a, 2)
        a('s_waitcnt lgkmcnt(0)')
    Ek, Pk = softmax_pair(a, [(acc(2, 0), acc(3, 0)), (acc(2, 1), acc(3, 1))], WP, BF)
    if dbl:
        a('s_add_u32 s34, s34, 1')
        a('s_cmp_lt_u32 s34, 2')
        a('s_cbranch_scc1 L_g1_dbl')
    for rt in range(2):
        for ftt in range(4):
            r = (Ek if ftt < 2 else Pk)[rt] + 2 * (ftt & 1)
            a(f'ds_write_b64 v12, v[{r}:{r+1}] offset:{ftt*1024+rt*512}')
    a('s_lshr_b32 s41, s18, 1')
    a('s_and_b32 s42, s18, 1')
    a('s_lshl_b32 s43, s41, 10')
    a('v_lshlrev_b32 v12, 3, v1')
    a('v_add_u32 v12, s43, v12')
    a('s_lshl_b32 s43, s42, 10')
    a('v_add_u32 v13, s43, v11')
    KA = BF
    KB = BF + 32
    KD = acc(2, 0); KZ = acc(2, 1); ONE = acc(3, 0)
    for r in range(4):
        a(f'v_mov_b32 v{ONE+r}, 0x3f803f80')
    a('s_waitcnt vmcnt(0) lgkmcnt(0)')
    a('s_barrier')
    stamp(a, 3)
    if gen.STAMP: a('s_waitcnt lgkmcnt(0)')
    for c in range(8):
        a(f'ds_read_b64_tr_b16 v[{KA+4*c}:{KA+4*c+1}], v12 offset:{c*6144}')
        a(f'ds_read_b64_tr_b16 v[{KA+4*c+2}:{KA+4*c+3}], v12 offset:{c*6144+512}')
        a(f'ds_read_b128 v[{KB+4*c}:{KB+4*c+3}], v13 offset:{c*6144+4096}')
        if c == 4: a('s_waitcnt lgkmcnt(12)')
        if c >= 4:
            cc = c - 4
            if c > 4: a('s_waitcnt lgkmcnt(12)')
            z = '0' if cc == 0 else None
            a(f'v_mfma_f32_16x16x32_bf16 v[{KD}:{KD+3}], v[{KA+4*cc}:{KA+4*cc+3}], v[{KB+4*cc}:{KB+4*cc+3}], {z or "v[%d:%d]" % (KD, KD+3)}')
            a(f'v_mfma_f32_16x16x32_bf16 v[{KZ}:{KZ+3}], v[{KA+4*cc}:{KA+4*cc+3}], v[{ONE}:{ONE+3}], {z or "v[%d:%d]" % (KZ, KZ+3)}')
    for cc in range(4, 8):
        a(f's_waitcnt lgkmcnt({3*(7-cc)})')
        a(f'v_mfma_f32_16x16x32_bf16 v[{KD}:{KD+3}], v[{KA+4*cc}:{KA+4*cc+3}], v[{KB+4*cc}:{KB+4*cc+3}], v[{KD}:{KD+3}]')
        a(f'v_mfma_f32_16x16x32_bf16 v[{KZ}:{KZ+3}], v[{KA+4*cc}:{KA+4*cc+3}], v[{ONE}:{ONE+3}], v[{KZ}:{KZ+3}]')
    a('s_mul_i32 s43, s17, %d' % (8 * KV_STRIDE))
    a('s_add_u32 s43, s43, %d' % KV_OFF)
    a('s_lshl_b32 s42, s18, 10')
    a('s_add_u32 s30, s42, s43')
    a('s_lshl_b32 s31, s41, 6')
    a('s_add_u32 s31, s31, s43')
    a('s_add_u32 s31, s31, 8192')
    a('s_mul_i32 s32, s16, %d' % KV_STRIDE)
    a('s_add_u32 s33, s30, s32')
    a('s_add_u32 s32, s31, s32')
    a('v_lshlrev_b32 v14, 4, v4')
    a('v_cmp_eq_u32 vcc, 0, v3')
    a('v_mov_b32 v15, 0x7ffffff0')
    a('v_cndmask_b32 v15, v15, v14, vcc')
    a(f'buffer_store_dwordx4 v[{KD}:{KD+3}], v11, s[56:59], s33 offen sc1')
    a(f'buffer_store_dwordx4 v[{KZ}:{KZ+3}], v15, s[56:59], s32 offen sc1')
    Eq, Pq = softmax_pair(a, [(acc(0, 0), acc(1, 0)), (acc(0, 1), acc(1, 1))], WP, BF)
    a('s_lshl_b32 s28, s17, 11')
    a('s_add_u32 s28, s28, %d' % CNT_OFF)
    a('s_lshl_b32 s29, s16, 8')
    a('s_add_u32 s29, s29, s28')
    a('v_mov_b32 v19, 1')
    a('v_mov_b32 v20, 0')
    a('s_waitcnt vmcnt(0)')
    a('s_barrier')
    a('s_cmp_eq_u32 s18, 0')
    a('s_cselect_b64 exec, 1, 0')
    a('buffer_store_dword v19, v20, s[56:59], s29 offen sc1')
    a('s_mov_b64 exec, -1')
    stamp(a, 4)
    if dbgpq:
        a('s_lshl_b32 s41, s17, 18')
        a('s_lshl_b32 s42, s19, 1')
        a('s_add_u32 s41, s41, s42')
        a('s_add_u32 s41, s41, %d' % PQ_OFF)
        for rt in range(2):
            a(f'buffer_store_dwordx4 v[{Eq[rt]}:{Eq[rt]+3}], v11, s[56:59], s41 offen offset:{rt*2048}')
            a(f'buffer_store_dwordx4 v[{Pq[rt]}:{Pq[rt]+3}], v11, s[56:59], s41 offen offset:{rt*2048+1024}')
        a('s_lshr_b32 s41, s18, 1')
    hp = ' sc1' if hsc1 else ''
    a('s_mul_i32 s42, s22, 7')
    a('s_add_u32 s43, s42, 6')
    a('s_mul_i32 s20, s23, 3')
    a('s_add_u32 s42, s42, s20')
    a('s_lshl_b32 s42, s42, 17')
    a('s_add_u32 s42, s42, s19')
    a('s_add_u32 s42, s42, %d' % HO_OFF)
    a('s_lshl_b32 s43, s43, 17')
    a('s_add_u32 s43, s43, s19')
    a('s_lshl_b32 s20, s23, 3')
    a('s_add_u32 s43, s43, s20')
    a('s_add_u32 s43, s43, %d' % HO_OFF)
    HT = 220
    for i in range(7):
        for rt in range(2):
            c = acc(6 + i, rt)
            for r in range(4):
                a(f'v_max_f32 v{c+r}, 0, v{c+r}')
        for rt in range(2):
            c = acc(6 + i, rt)
            for r in range(4):
                a(f'v_mul_f32 v{c+r}, v{c+r}, v{c+r}')
        for rt in range(2):
            c = acc(6 + i, rt)
            o = HT + rt * 4 + (i & 1) * 2 + ((i >> 1) & 1) * 8
            a(f'v_cvt_pk_bf16_f32 v{o}, v{c}, v{c+1}')
            a(f'v_cvt_pk_bf16_f32 v{o+1}, v{c+2}, v{c+3}')
            if i & 1:
                a(f'buffer_store_dwordx4 v[{o-2}:{o+1}], v11, s[56:59], s42 offen offset:{rt*1024}{hp}')
            elif i == 6:
                a(f'buffer_store_dwordx2 v[{o}:{o+1}], v11, s[56:59], s43 offen offset:{rt*1024}{hp}')
        if i & 1:
            a('s_add_u32 s42, s42, 0x20000')
    stamp(a, 5)
    a('s_cmp_lg_u32 s18, 0')
    a('s_cbranch_scc1 L_g1_go')
    a('s_mov_b32 s34, 0')
    a('v_and_b32 v20, 7, v1')
    a('v_lshlrev_b32 v20, 8, v20')
    a.label('L_g1_poll')
    a('buffer_load_dword v19, v20, s[56:59], s28 offen sc1')
    a('s_add_u32 s34, s34, 1')
    a('s_waitcnt vmcnt(0)')
    a('v_cmp_eq_u32 vcc, 0, v19')
    a('s_cmp_gt_u32 s34, 200000')
    a('s_cbranch_scc1 L_g1_go')
    a('s_cbranch_vccnz L_g1_poll')
    a.label('L_g1_go')
    a('s_barrier')
    stamp(a, 6)
    PT = 72; PZ = 40
    for p in range(8):
        a(f'buffer_load_dwordx4 v[{PT+4*p}:{PT+4*p+3}], v11, s[56:59], s30 offen sc1')
        a(f'buffer_load_dwordx4 v[{PZ+4*p}:{PZ+4*p+3}], v14, s[56:59], s31 offen sc1')
        if p < 7:
            a('s_add_u32 s30, s30, %d' % KV_STRIDE)
            a('s_add_u32 s31, s31, %d' % KV_STRIDE)
    OL = 2 * STG
    a('s_lshr_b32 s42, s41, 1')
    a('s_mul_i32 s42, s42, 3072')
    a('s_and_b32 s20, s41, 1')
    a('s_lshl_b32 s20, s20, 3')
    a('s_add_u32 s42, s42, s20')
    a('s_add_u32 s42, s42, %d' % OL)
    a('v_add_u32 v13, s42, v11')
    a('s_and_b32 s20, s18, 1')
    a('s_lshl_b32 s20, s20, 10')
    a('v_add_u32 v12, s20, v13')
    a('s_add_u32 s42, s17, 112')
    a('s_lshl_b32 s42, s42, 17')
    a('s_add_u32 s42, s42, s19')
    a('s_add_u32 s42, s42, %d' % HO_OFF)
    for p in range(1, 8):
        a(f's_waitcnt vmcnt({14-2*p})')
        for r in range(4):
            a(f'v_add_f32 v{PT+r}, v{PT+r}, v{PT+4*p+r}')
            a(f'v_add_f32 v{PZ+r}, v{PZ+r}, v{PZ+4*p+r}')
    a(f'v_cvt_pk_bf16_f32 v{PT+4}, v{PT}, v{PT+1}')
    a(f'v_cvt_pk_bf16_f32 v{PT+5}, v{PT+2}, v{PT+3}')
    a(f'v_cvt_pk_bf16_f32 v{PT+6}, v{PZ}, v{PZ+1}')
    a(f'v_cvt_pk_bf16_f32 v{PT+7}, v{PZ+2}, v{PZ+3}')
    a(f'ds_write_b64 v12, v[{PT+4}:{PT+5}]')
    a(f'ds_write_b64 v13, v[{PT+6}:{PT+7}] offset:2048')
    a('s_waitcnt lgkmcnt(0)')
    a('s_barrier')
    KF = 40
    for f in range(6):
        a(f'ds_read_b128 v[{KF+4*f}:{KF+4*f+3}], v11 offset:{OL+1024*f}')
    a('s_waitcnt lgkmcnt(0)')
    for rt in range(2):
        D = 72 + rt * 12
        for dt in range(3):
            a(f'v_mfma_f32_16x16x32_bf16 v[{D+4*dt}:{D+4*dt+3}], v[{KF+4*dt}:{KF+4*dt+3}], v[{Eq[rt]}:{Eq[rt]+3}], 0')
    for rt in range(2):
        D = 72 + rt * 12
        for dt in (2, 0, 1):
            a(f'v_mfma_f32_16x16x32_bf16 v[{D+4*dt}:{D+4*dt+3}], v[{KF+12+4*dt}:{KF+12+4*dt+3}], v[{Pq[rt]}:{Pq[rt]+3}], v[{D+4*dt}:{D+4*dt+3}]')
    st = []
    for rt in range(2):
        o = L()
        D = 72 + rt * 12
        o(f'v_cvt_pk_bf16_f32 v{D+8}, v{D+8}, v{D+8}')
        o(f'v_and_b32 v{D+8}, 0xffff0000, v{D+8}')
        o(f'v_add_f32 v{D+8}, 0x358637bd, v{D+8}')
        o(f'v_cvt_pk_bf16_f32 v{D+8}, v{D+8}, v{D+8}')
        o(f'v_and_b32 v{D+8}, 0xffff0000, v{D+8}')
        o(f'v_rcp_f32 v{D+8}, v{D+8}')
        for j in range(0, 8, 2):
            o(f'v_cvt_pk_bf16_f32 v{D+9}, v{D+j}, v{D+j+1}')
            o(f'v_lshlrev_b32 v{D+j}, 16, v{D+9}')
            o(f'v_and_b32 v{D+j+1}, 0xffff0000, v{D+9}')
            o(f'v_mul_f32 v{D+j}, v{D+j}, v{D+8}')
            o(f'v_mul_f32 v{D+j+1}, v{D+j+1}, v{D+8}')
            o(f'v_cvt_pk_bf16_f32 v{100+rt*4+j//2}, v{D+j}, v{D+j+1}')
        o(f'buffer_store_dwordx4 v[{100+rt*4}:{103+rt*4}], v11, s[56:59], s42 offen offset:{rt*1024}{hp}')
        st.append(o)
    interleave(a, st)
    stamp_final(a, 7, 1, 12, 8)
    a.label('L_g1_done')
    a('s_endpgm')
    return name, '(256,1,1)', '(512,1,1)', LDS, kdesc(name, 256, 100)

if __name__ == '__main__':
    path = sys.argv[1] if len(sys.argv) > 1 else 'v3.s'
    if '--stamp' in sys.argv: gen.STAMP = True
    kw = {}
    for x in sys.argv[2:]:
        if '=' in x:
            k, v = x.split('='); kw[k] = eval(v)
    sel = lambda p: {k[3:]: v for k, v in kw.items() if k.startswith(p)}
    g2kw = dict(PF=False); g2kw.update(sel('g2_'))
    build(path, [lambda a: gen_lnv2(a, **sel('ln_')), lambda a: gen_g1v2(a, **sel('g1_')), lambda a: gen_g2v2(a, **g2kw)])
```

```python
import re

TRANS = ('v_exp_f32', 'v_log_f32', 'v_rcp_f32', 'v_rsq_f32', 'v_sqrt_f32', 'v_sin_f32', 'v_cos_f32', 'v_rcp_iflag_f32')

def parse_regs(tok):
    tok = tok.strip()
    tok = tok.lstrip('-')
    m = re.match(r'^\|?abs\((.*)\)$', tok)
    if m: tok = m.group(1)
    tok = tok.strip('|')
    m = re.match(r'^([vas])(\d+)$', tok)
    if m: return [(m.group(1), int(m.group(2)))]
    m = re.match(r'^([vas])\[(\d+):(\d+)\]$', tok)
    if m: return [(m.group(1), i) for i in range(int(m.group(2)), int(m.group(3)) + 1)]
    if tok == 'vcc': return [('s', 'vcc')]
    if tok == 'm0': return [('s', 'm0')]
    if tok == 'exec': return [('s', 'exec')]
    return []

def split_ops(s):
    out, depth, cur = [], 0, ''
    for ch in s:
        if ch in '[(': depth += 1
        if ch in '])': depth -= 1
        if ch == ',' and depth == 0:
            out.append(cur.strip()); cur = ''
        else:
            cur += ch
    if cur.strip(): out.append(cur.strip())
    return out

class Ins:
    __slots__ = ('text', 'mn', 'kind', 'wr', 'rd', 'srcc', 'ab', 'passes', 'states', 'dpp', 'wide_store_data', 'lds_dma', 'sdwa', 'dotab')

def analyze(text):
    I = Ins()
    I.text = text
    body = text.split(';')[0].strip()
    parts = body.split(None, 1)
    mn = parts[0]
    I.mn = mn
    rest = parts[1] if len(parts) > 1 else ''
    ops = split_ops(rest)
    toks = []
    mods = []
    for o in ops:
        p = o.split()
        toks.append(p[0] if p else '')
        mods += p[1:]
    I.wr, I.rd, I.srcc, I.ab = [], [], [], []
    I.passes = 0
    I.states = 1
    I.dpp = ('_dpp' in mn) or any(m.startswith(('row_', 'quad_perm', 'wave_')) for m in mods)
    I.sdwa = '_sdwa' in mn
    I.wide_store_data = []
    I.lds_dma = False
    R = [parse_regs(t) for t in toks]
    I.dotab = (R[1] + R[2]) if mn.startswith('v_dot') else []
    if mn == 's_nop':
        I.kind = 'nop'; I.states = int(toks[0], 0) + 1
    elif mn.startswith('v_mfma'):
        I.kind = 'mfma'
        I.passes = 8 if '32x32' in mn else 4
        I.wr = R[0]; I.ab = R[1] + R[2]; I.srcc = R[3]; I.rd = I.ab + I.srcc
    elif mn.startswith('v_'):
        I.kind = 'trans' if mn.replace('_e32', '').replace('_e64', '') in TRANS else 'valu'
        if mn.startswith('v_cmp'):
            I.wr = R[0]; I.rd = sum(R[1:], [])
        elif mn.startswith(('v_permlane32_swap', 'v_permlane16_swap')):
            I.kind = 'permlane'; I.wr = R[0] + R[1]; I.rd = R[0] + R[1]
        elif mn.startswith(('v_readfirstlane', 'v_readlane')):
            I.kind = 'readlane'; I.wr = R[0]; I.rd = sum(R[1:], [])
        elif mn.startswith(('v_add_co', 'v_sub_co', 'v_addc_co', 'v_subb_co')):
            I.wr = R[0] + R[1]; I.rd = sum(R[2:], [])
        else:
            I.wr = R[0]; I.rd = sum(R[1:], [])
            if mn.startswith(('v_fmac', 'v_dot2c', 'v_pk_fmac', 'v_writelane')) or I.dpp or I.sdwa:
                I.rd = I.rd + R[0]
            if mn.startswith('v_cndmask') and len(toks) == 3:
                I.rd = I.rd + [('s', 'vcc')]
    elif mn.startswith(('buffer_', 'global_')):
        I.kind = 'vmem'
        islds = ('lds' in mods) or ('_lds_' in mn)
        I.lds_dma = islds
        if 'load' in mn and not islds:
            I.wr = R[0]; I.rd = sum(R[1:], [])
        elif 'atomic' in mn and 'sc0' in mods:
            I.wr = R[0]; I.rd = sum(R, [])
        else:
            I.rd = sum(R, [])
            if 'store' in mn and (mn.endswith('x4') or mn.endswith('x3')):
                I.wide_store_data = R[0] if mn.startswith('buffer_') else R[1]
        if islds: I.rd = I.rd + [('s', 'm0')]
    elif mn.startswith('ds_'):
        I.kind = 'ds'
        if mn.startswith(('ds_read', 'ds_bpermute', 'ds_permute', 'ds_swizzle')):
            I.wr = R[0]; I.rd = sum(R[1:], [])
        else:
            I.rd = sum(R, [])
    elif mn.startswith('s_'):
        I.kind = 'salu'
        if mn.startswith(('s_cmp', 's_waitcnt', 's_barrier', 's_branch', 's_cbranch', 's_endpgm', 's_setprio', 's_sleep', 's_bitcmp')):
            I.rd = sum(R, [])
        else:
            I.wr = R[0] if R else []
            I.rd = sum(R[1:], [])
            if 'saveexec' in mn: I.wr = I.wr + [('s', 'exec')]
    else:
        raise ValueError('unknown instr ' + text)
    return I

VALUISH = ('valu', 'trans', 'permlane', 'readlane')

def need(prod, cons):
    n = 0
    pw = set(prod.wr); cr = set(cons.rd); cw = set(cons.wr)
    pv = {r for r in pw if r[0] in 'va'}
    ps = {r for r in pw if r[0] == 's'}
    if prod.kind in VALUISH:
        if cons.kind == 'mfma' and pv & cr: n = max(n, 2)
        if cons.kind == 'permlane' and pv & cr: n = max(n, 2)
        if cons.dpp and pv & cr: n = max(n, 2)
        if cons.kind == 'readlane' and pv & cr: n = max(n, 1)
        if prod.kind == 'trans' and cons.kind in VALUISH + ('mfma',) and cons.kind != 'trans' and pv & cr: n = max(n, 1)
        if prod.kind == 'trans' and cons.kind in ('vmem', 'ds') and pv & cr: n = max(n, 1)
        if prod.sdwa and cons.kind in VALUISH and pv & (cr | cw): n = max(n, 1)
        if ps:
            if cons.kind in VALUISH and ps & cr: n = max(n, 4 if cons.kind == 'readlane' else 2)
            if cons.kind == 'vmem' and ps & cr: n = max(n, 5)
            if cons.kind == 'salu' and ps & cr: n = max(n, 1)
    if prod.mn.startswith('v_dot'):
        if cons.mn == prod.mn:
            if pv & set(cons.dotab): n = max(n, 3)
        elif pv & (cr | cw): n = max(n, 3)
    if prod.kind == 'mfma':
        p = prod.passes
        if cons.kind == 'mfma':
            if pv & set(cons.ab): n = max(n, 8 if p == 4 else 12)
            if pv & set(cons.srcc):
                if not (prod.wr == cons.srcc and p == cons.passes): n = max(n, 6 if p == 4 else 10)
            if pv & cw and not (pv & set(cons.srcc)): n = max(n, 6 if p == 4 else 10)
        elif cons.kind in VALUISH or cons.kind in ('vmem', 'ds'):
            if pv & (cr | cw): n = max(n, 8 if p == 4 else 12)
        if cons.kind in VALUISH and set(prod.srcc) & cw: n = max(n, 3 if p == 4 else 7)
    if prod.kind == 'salu' and ('s', 'm0') in pw and cons.lds_dma: n = max(n, 1)
    if prod.wide_store_data and set(prod.wide_store_data) & cw:
        n = max(n, 2 if cons.kind in VALUISH else 1)
    return n

class Asm:
    def __init__(self):
        self.out = []
        self.hist = []
        self.nops = 0
    def raw(self, line):
        self.out.append(line)
    def label(self, name):
        self.out.append(name + ':')
    def comment(self, c):
        self.out.append('    ; ' + c)
    def __call__(self, text):
        for t in text.strip().split('\n'):
            t = t.strip()
            if not t or t.startswith(';'): continue
            self._emit(t)
    def _emit(self, text):
        I = analyze(text)
        pad = 0
        dist = 0
        for P in reversed(self.hist):
            n = need(P, I)
            if n > dist: pad = max(pad, n - dist)
            dist += P.states
            if dist > 20: break
        while pad > 0:
            k = min(pad, 16)
            N = analyze('s_nop %d' % (k - 1))
            self.out.append('    s_nop %d' % (k - 1))
            self.hist.append(N); self.nops += 1
            pad -= k
        self.out.append('    ' + text)
        self.hist.append(I)
        if len(self.hist) > 40: self.hist = self.hist[-40:]
    def fence(self, n=12):
        self('s_nop %d' % (n - 1))
    def text(self):
        return '\n'.join(self.out) + '\n'

def vr(a, n=1):
    return 'v%d' % a if n == 1 else 'v[%d:%d]' % (a, a + n - 1)
def ar(a, n=1):
    return 'a%d' % a if n == 1 else 'a[%d:%d]' % (a, a + n - 1)
def sr(a, n=1):
    return 's%d' % a if n == 1 else 's[%d:%d]' % (a, a + n - 1)
```

```python
import sys
from asmlib import *
import gen
from gen import srd, srd_off, kstart, kdesc, build, HO_OFF, HO_BYTES, PQ_OFF
from gen3 import interleave, L, butterfly4

OOB = 0x40000000
KV_OFF = 32 << 20
WQ_OFF = 35 << 20
WF_OFF = WQ_OFF + (128 << 10)
ST_OFF = 36 << 20
RS_OFF = ST_OFF + (64 << 10)
FL_OFF = 38 << 20
F1_OFF = FL_OFF
F2_OFF = FL_OFF + (64 << 10)
F3_OFF = FL_OFF + (128 << 10)
EX_OFF = 40 << 20
WS_BYTES = 56 << 20
STAMP_OFF = 56 << 20
B_LDS = 65536; SLOT = 13312; NSL = 7
JUNK = B_LDS + NSL * SLOT
WPHI_LDS = JUNK + 1024
LDS_TOTAL = 163840
STAMP = False

class Q:
    def __init__(self): self.ops = []
    def issue(self, tag): self.ops.append(tag)
    def need(self, tag):
        for i in range(len(self.ops) - 1, -1, -1):
            if self.ops[i] == tag: return len(self.ops) - 1 - i
        raise KeyError(tag)

class E:
    def __init__(self, a):
        self.a = a; self.vm = Q(); self.lg = Q(); self.mode = 'direct'; self.W = None
    def __call__(self, t):
        if self.mode != 'sim': self.a(t)
    def v(self, tag, t):
        self.vm.issue(tag); self(t)
    def d(self, tag, t):
        self.lg.issue(tag); self(t)
    def wait(self, key, vm=(), lg=()):
        if self.mode == 'emit':
            nv, nl = self.W[key]
        else:
            nv = min([self.vm.need(t) for t in vm] + [63]); nl = min([self.lg.need(t) for t in lg] + [15])
            if self.mode == 'sim':
                o = self.W.get(key, (63, 15))
                self.W[key] = (min(o[0], nv), min(o[1], nl))
                return
        s = []
        if vm and nv < 63: s.append('vmcnt(%d)' % nv)
        if lg: s.append('lgkmcnt(%d)' % nl)
        if s: self.a('s_waitcnt ' + ' '.join(s))
    def item(self, x):
        if isinstance(x, str): self(x)
        elif x[0] == 'v': self.v(x[1], x[2])
        elif x[0] == 'd': self.d(x[1], x[2])
        elif x[0] == 'w': self.wait(None, x[1], x[2])
        elif x[0] == 'f': x[1]()
        else: raise ValueError(x)

def stamp(a, i):
    if not STAMP: return
    a('s_memtime s[70:71]')
    a('s_waitcnt lgkmcnt(0)')
    a(f'v_writelane_b32 v2, s70, {i}')
def stamp_rt(a, i):
    if not STAMP: return
    a('s_memrealtime s[70:71]')
    a('s_waitcnt lgkmcnt(0)')
    a(f'v_writelane_b32 v2, s70, {i}')
def stamp_final(a, n):
    if not STAMP: return
    a('s_waitcnt vmcnt(0)')
    stamp(a, n)
    stamp_rt(a, 31)
    srd_off(a, 72, 22, 23, STAMP_OFF, 1 << 20)
    a('s_lshl_b32 s70, s2, 3')
    a('s_add_u32 s70, s70, s28')
    a('s_lshl_b32 s70, s70, 8')
    a('v_lshlrev_b32 v0, 2, v1')
    a('buffer_store_dword v2, v0, s[72:75], s70 offen')

def softmax_pair(o, C, WP, R, SC):
    P = [R, R + 8]; Ee = [R + 16, R + 24]; Qq = R + 32
    PK = [Qq, Qq + 4]
    for rt in range(2):
        c0, c1 = C[rt]
        for c in (c0, c1):
            for r in range(4): o(f'v_mul_f32 v{c+r}, v{c+r}, v{SC[rt]}')
        o(f'v_cvt_pk_bf16_f32 v{PK[rt]}, v{c0}, v{c0+1}')
        o(f'v_cvt_pk_bf16_f32 v{PK[rt]+1}, v{c0+2}, v{c0+3}')
        o(f'v_cvt_pk_bf16_f32 v{PK[rt]+2}, v{c1}, v{c1+1}')
        o(f'v_cvt_pk_bf16_f32 v{PK[rt]+3}, v{c1+2}, v{c1+3}')
        for ft in range(2):
            o(f'v_mfma_f32_16x16x32_bf16 v[{P[rt]+4*ft}:{P[rt]+4*ft+3}], v[{WP+4*ft}:{WP+4*ft+3}], v[{PK[rt]}:{PK[rt]+3}], 0')
    mx = [Ee[0], Ee[0] + 2]; nm = [Ee[0] + 1, Ee[0] + 3]
    for rt in range(2):
        p = P[rt]
        o(f'v_max3_f32 v{mx[rt]}, v{p}, v{p+1}, v{p+2}')
        o(f'v_max3_f32 v{nm[rt]}, -v{p}, -v{p+1}, -v{p+2}')
    for (x, y) in ((3, 4), (5, 6)):
        for rt in range(2):
            p = P[rt]
            o(f'v_max3_f32 v{mx[rt]}, v{mx[rt]}, v{p+x}, v{p+y}')
            o(f'v_max3_f32 v{nm[rt]}, v{nm[rt]}, -v{p+x}, -v{p+y}')
    m2 = [Qq, Qq + 2]; n2 = [Qq + 1, Qq + 3]
    for rt in range(2):
        p = P[rt]
        o(f'v_max_f32 v{m2[rt]}, v{mx[rt]}, v{p+7}')
        o(f'v_max_f32_e64 v{n2[rt]}, v{nm[rt]}, -v{p+7}')
    mx, nm = m2, n2
    butterfly4(o, 'v_max_f32', mx[0], nm[0], mx[1], nm[1], None, lambda r: o(f'v_mul_f32 v{r}, 0xbfb8aa3b, v{r}'))
    for j in range(8):
        for rt in range(2):
            o(f'v_fmamk_f32 v{Ee[rt]+j}, v{P[rt]+j}, 0x3fb8aa3b, v{mx[rt]}')
            o(f'v_fmamk_f32 v{P[rt]+j}, v{P[rt]+j}, 0xbfb8aa3b, v{nm[rt]}')
    S = [Qq + 4, Qq + 6]; T = [Qq + 5, Qq + 7]
    for j in range(8):
        for rt in range(2):
            o(f'v_exp_f32 v{Ee[rt]+j}, v{Ee[rt]+j}')
            o(f'v_exp_f32 v{P[rt]+j}, v{P[rt]+j}')
        if j == 2:
            for rt in range(2):
                o(f'v_add_f32 v{S[rt]}, v{Ee[rt]}, v{Ee[rt]+1}')
                o(f'v_add_f32 v{T[rt]}, v{P[rt]}, v{P[rt]+1}')
        elif j > 2:
            for rt in range(2):
                o(f'v_add_f32 v{S[rt]}, v{S[rt]}, v{Ee[rt]+j-1}')
                o(f'v_add_f32 v{T[rt]}, v{T[rt]}, v{P[rt]+j-1}')
    for rt in range(2):
        o(f'v_add_f32 v{S[rt]}, v{S[rt]}, v{Ee[rt]+7}')
        o(f'v_add_f32 v{T[rt]}, v{T[rt]}, v{P[rt]+7}')
    butterfly4(o, 'v_add_f32', S[0], T[0], S[1], T[1], None, lambda r: o(f'v_rcp_f32 v{r}, v{r}'))
    for j in range(4):
        for rt in range(2):
            o(f'v_mul_f32 v{Ee[rt]+2*j}, v{Ee[rt]+2*j}, v{S[rt]}')
            o(f'v_mul_f32 v{Ee[rt]+2*j+1}, v{Ee[rt]+2*j+1}, v{S[rt]}')
            o(f'v_mul_f32 v{P[rt]+2*j}, v{P[rt]+2*j}, v{T[rt]}')
            o(f'v_mul_f32 v{P[rt]+2*j+1}, v{P[rt]+2*j+1}, v{T[rt]}')
        for rt in range(2):
            o(f'v_cvt_pk_bf16_f32 v{Ee[rt]+j}, v{Ee[rt]+2*j}, v{Ee[rt]+2*j+1}')
            o(f'v_cvt_pk_bf16_f32 v{P[rt]+j}, v{P[rt]+2*j}, v{P[rt]+2*j+1}')
    return Ee, P

def gen_fused(a, LA=6, LA2=4, bsc1=True, dbgpq=False, stop1=False, role=True,
              dX=(0, 3, 6, 9), arX=(1, 2, 4, 5), adX=(12, 15, 18, 22),
              dY=(9, 11, 14, 17), arY=(12, 13, 15, 16), adY=(23, 25, 2, 4),
              cspos=(10, 14, 19, 24, 30, 36, 42, 48), o1pos=18, o2pos=30, AL2=5):
    name = 'fused_kernel'
    ACC = 24; BF = 128; AF = 180; XR = 212
    def acc(ct, rt): return ACC + (ct * 2 + rt) * 4
    e = E(a)
    sc = ' sc1' if bsc1 else ''
    kstart(a, name)
    a('s_cmp_ge_u32 s2, 256')
    a('s_cbranch_scc1 L_done')
    a('s_load_dwordx8 s[4:11], s[0:1], 0')
    a('s_load_dwordx8 s[12:19], s[0:1], 40')
    a('s_load_dwordx4 s[20:23], s[0:1], 80')
    a('s_and_b32 s24, s2, 7')
    a('s_lshr_b32 s25, s2, 3')
    a('s_and_b32 s26, s25, 7')
    a('s_lshr_b32 s31, s25, 3')
    a('s_lshl_b32 s27, s24, 2')
    a('s_add_u32 s27, s27, s31')
    a('v_and_b32 v1, 63, v0')
    a('v_lshrrev_b32 v2, 6, v0')
    a('v_readfirstlane_b32 s28, v2')
    a('v_and_b32 v3, 15, v1')
    a('v_lshrrev_b32 v4, 4, v1')
    a('v_lshlrev_b32 v11, 4, v1')
    a('s_and_b32 s29, s28, 3')
    a('s_lshr_b32 s30, s28, 2')
    a('s_lshl_b32 s35, s30, 5')
    a('s_lshr_b32 s31, s27, 1')
    a('s_and_b32 s32, s27, 1')
    a('s_mul_i32 s33, s31, 448')
    a('s_mul_i32 s98, s32, 192')
    a('s_add_u32 s98, s98, s33')
    a('s_lshl_b32 s99, s32, 5')
    a('s_add_u32 s99, s99, s33')
    a('s_add_u32 s99, s99, 192')
    a('s_lshl_b32 s100, s27, 6')
    a('s_lshl_b32 s31, s26, 8')
    a('s_lshl_b32 s32, s27, 3')
    a('s_add_u32 s101, s31, s32')
    a('s_add_u32 s101, s101, s28')
    a('s_lshl_b32 s34, s101, 11')
    a('s_lshl_b32 s90, s26, 19')
    a('s_lshl_b32 s31, s28, 16')
    a('s_add_u32 s90, s90, s31')
    a('s_add_u32 s91, s90, 0x8000')
    a('s_lshl_b32 s92, s28, 13')
    a('v_lshrrev_b32 v9, 3, v1')
    a('v_lshlrev_b32 v9, 11, v9')
    a('v_and_b32 v14, 7, v1')
    a('v_xor_b32 v14, v14, v4')
    a('v_lshl_add_u32 v9, v14, 4, v9')
    a('v_xor_b32 v10, 64, v9')
    a('v_add_u32 v10, 0x4000, v10')
    def kofR(R, out, t):
        a(f'v_bfe_u32 v{out}, v{R}, 2, 2')
        a(f'v_and_b32 v{t}, 3, v{R}')
        a(f'v_lshl_add_u32 v{out}, v{out}, 3, v{t}')
        a(f'v_lshrrev_b32 v{t}, 4, v{R}')
        a(f'v_lshl_add_u32 v{out}, v{t}, 2, v{out}')
        a(f'v_add_u32 v{out}, s35, v{out}')
    def fQ(dst, sP):
        a(f'v_add_u32 v14, s{sP}, v1')
        a('v_mul_u32_u24 v15, 0x1556, v14')
        a('v_lshrrev_b32 v15, 16, v15')
        a('v_mul_u32_u24 v16, 12, v15')
        a('v_sub_u32 v16, v14, v16')
        kofR(15, 17, 18)
        a(f'v_mul_u32_u24 v{dst}, 6144, v17')
        a('v_lshrrev_b32 v17, 2, v16')
        a(f'v_lshl_add_u32 v{dst}, v17, 11, v{dst}')
        a('v_bfe_u32 v17, v15, 2, 1')
        a('v_lshlrev_b32 v17, 1, v17')
        a('v_xor_b32 v17, v17, v16')
        a('v_and_b32 v17, 3, v17')
        a(f'v_lshl_add_u32 v{dst}, v17, 4, v{dst}')
        a(f'v_add_u32 v{dst}, s100, v{dst}')
    def fF(dst, sP):
        a(f'v_add_u32 v14, s{sP}, v1')
        a('v_mul_u32_u24 v15, 0x124a, v14')
        a('v_lshrrev_b32 v15, 16, v15')
        a('v_mul_u32_u24 v16, 14, v15')
        a('v_sub_u32 v16, v14, v16')
        kofR(15, 17, 18)
        a(f'v_mul_u32_u24 v{dst}, 7168, v17')
        a(f'v_lshl_add_u32 v{dst}, v16, 4, v{dst}')
        a('v_cmp_gt_u32 vcc, 12, v16')
        a('v_cndmask_b32 v17, v20, v19, vcc')
        a(f'v_add_u32 v{dst}, v{dst}, v17')
    a('v_mov_b32 v19, s98')
    a('v_mov_b32 v20, s99')
    a('s_lshl_b32 s31, s29, 6')
    fQ(5, 31)
    a('s_add_u32 s32, s31, 128')
    fF(7, 32)
    a('s_add_u32 s32, s31, 256')
    fQ(6, 32)
    a('s_sub_u32 s32, s31, 128')
    a('s_cmp_lt_u32 s29, 2')
    a('s_cselect_b32 s32, 384, s32')
    fF(8, 32)
    a('s_cmp_lt_u32 s29, 2')
    a('s_cselect_b64 vcc, -1, 0')
    a('v_cndmask_b32 v6, v8, v6, vcc')
    a('s_mov_b32 s64, 0')
    a('s_mov_b32 s65, 0')
    a('s_mov_b32 s66, 0')
    a('s_mov_b32 s67, 0')
    a('s_mov_b32 s68, %d' % (64 * 7168))
    a('s_cselect_b32 s68, %d, s68' % (64 * 6144))
    a('s_mov_b32 s69, %d' % (64 * 7168))
    a('s_mul_i32 s88, s30, %d' % SLOT)
    a('s_lshl_b32 s31, s29, 10')
    a('s_add_u32 s88, s88, s31')
    a('s_add_u32 s88, s88, %d' % B_LDS)
    a('s_add_u32 s87, s31, %d' % (B_LDS + NSL * SLOT))
    a('s_waitcnt lgkmcnt(0)')
    if STAMP:
        stamp_rt(a, 30); stamp(a, 0)
    srd(a, 52, 4, 5, 4 << 20)
    e.v('S', f'buffer_load_dwordx4 v[244:247], v11, s[52:55], s34 offen')
    e.v('S', f'buffer_load_dwordx4 v[248:251], v11, s[52:55], s34 offen offset:1024')
    srd(a, 36, 6, 7, 1024 * 6144)
    srd(a, 44, 12, 13, 1024 * 7168)
    a('s_cmp_lt_u32 s29, 2')
    a('s_cselect_b32 s40, s6, s12')
    a('s_cselect_b32 s41, s7, s13')
    a('s_cselect_b32 s42, s38, s46')
    a('s_mov_b32 s43, 0x00020000')
    a('s_mov_b32 s48, s12')
    a('s_mov_b32 s49, s13')
    a('s_cmp_eq_u32 s29, 0')
    a('s_cselect_b32 s50, s46, 0')
    a('s_mov_b32 s51, 0x00020000')
    def bdma(j, s):
        if j == 0:
            e('s_mov_b32 m0, s88')
            e.v(('B', s), f'buffer_load_dwordx4 v5, s[36:39], s64 offen{sc} lds')
            e('s_add_u32 s64, s64, %d' % (64 * 6144))
        elif j == 1:
            e('s_add_u32 m0, s88, 4096')
            e.v(('B', s), f'buffer_load_dwordx4 v6, s[40:43], s65 offen{sc} lds')
            e('s_add_u32 s65, s65, s68')
        elif j == 2:
            e('s_add_u32 m0, s88, 8192')
            e.v(('B', s), f'buffer_load_dwordx4 v7, s[44:47], s66 offen{sc} lds')
            e('s_add_u32 s66, s66, %d' % (64 * 7168))
        else:
            e('s_add_u32 s89, s88, 12288')
            e('s_cmp_eq_u32 s29, 0')
            e('s_cselect_b32 m0, s89, %d' % JUNK)
            e.v(('B', s), f'buffer_load_dwordx4 v8, s[48:51], s67 offen{sc} lds')
            e('s_add_u32 s67, s67, s69')
            e('s_add_u32 s88, s88, %d' % (2 * SLOT))
            e('s_sub_u32 s89, s88, %d' % (NSL * SLOT))
            e('s_cmp_ge_u32 s88, s87')
            e('s_cselect_b32 s88, s89, s88')
    def adma(p, s):
        e(f's_add_u32 m0, s92, {(s & 1) * 4096 + p * 1024}')
        e.v(('A', s), f'buffer_load_dwordx4 v{9 + (p & 1)}, s[52:55], s{90 + (p >> 1)} offen lds')
        if p == 1: e('s_add_u32 s90, s90, 128')
        if p == 3: e('s_add_u32 s91, s91, 128')
    def aread(q, s):
        kk, rt = q >> 1, q & 1
        r = AF + (((s & 1) * 2 + kk) * 2 + rt) * 4
        e.d(('AR', 2 * s + kk), f'ds_read_b128 v[{r}:{r+3}], v{12 + kk} offset:{(s & 1) * 4096 + rt * 2048}')
    for j in range(4): bdma(j, 0)
    for p in range(4): adma(p, 0)
    for j in range(4): bdma(j, 1)
    for p in range(4): adma(p, 1)
    srd(a, 56, 22, 23, WS_BYTES)
    a('v_bfe_u32 v14, v3, 1, 3')
    a('v_xor_b32 v14, v14, v4')
    a('v_lshlrev_b32 v12, 7, v3')
    a('v_lshl_add_u32 v12, v14, 4, v12')
    a('v_add_u32 v12, s92, v12')
    a('v_xor_b32 v13, 64, v12')
    a('v_lshrrev_b32 v14, 2, v1')
    a('v_and_b32 v15, 3, v1')
    a('v_lshlrev_b32 v15, 3, v15')
    a('v_mul_u32_u24 v21, 192, v14')
    a('v_add_u32 v21, v21, v15')
    a('v_and_b32 v16, 1, v4')
    a('v_lshl_add_u32 v21, v16, 5, v21')
    a('v_add_u32 v21, %d, v21' % B_LDS)
    a('v_xor_b32 v22, 32, v21')
    a('v_mul_u32_u24 v23, 224, v14')
    a('v_add_u32 v23, v23, v15')
    a('v_add_u32 v23, %d, v23' % (B_LDS + 6144))
    a('s_mov_b32 s93, 0')
    a('s_mov_b32 s94, 0')
    a('s_mov_b32 s95, %d' % SLOT)
    a('v_mov_b32 v20, 0x%x' % OOB)
    a('s_lshr_b32 s31, s24, 1')
    a('s_mul_i32 s32, s30, 3')
    a('s_add_u32 s32, s32, s29')
    a('s_sub_u32 s32, s32, 1')
    a('s_mul_i32 s33, s25, 28')
    a('s_mul_i32 s34, s32, 7')
    a('s_add_u32 s33, s33, s34')
    a('s_mul_i32 s34, s31, %d' % (896 * 16))
    a('s_add_u32 s33, s33, s34')
    a('s_lshl_b32 s34, s31, 12')
    a('s_lshl_b32 s35, s25, 3')
    a('s_add_u32 s34, s34, s35')
    a('s_cmp_eq_u32 s32, 4')
    a('s_cselect_b32 s33, s34, s33')
    a('s_cselect_b32 s34, 8, 7')
    a('s_cselect_b32 s35, %d, %d' % (2, 7))
    a('s_cselect_b32 s60, s10, s16')
    a('s_cselect_b32 s61, s11, s17')
    a('s_mov_b32 s62, %d' % (3584 * 2048))
    a('s_cselect_b32 s62, 0x200000, s62')
    a('s_lshl_b32 s33, s33, 7')
    a('s_lshl_b32 s35, s35, 14')
    a('s_cmp_eq_u32 s32, 5')
    a('s_cselect_b32 s62, 0, s62')
    if not role: a('s_mov_b32 s62, 0')
    a('v_lshlrev_b32 v14, 7, v1')
    a('v_cmp_gt_u32 vcc, s34, v1')
    a('v_cndmask_b32 v14, v20, v14, vcc')
    a('s_cmp_eq_u32 s29, 0')
    a('s_cselect_b32 s48, s48, s60')
    a('s_cselect_b32 s49, s49, s61')
    a('s_cselect_b32 s50, s50, s62')
    a('s_cselect_b32 s67, s67, s33')
    a('s_cselect_b32 s69, s69, s35')
    a('s_cselect_b64 vcc, -1, 0')
    a('v_cndmask_b32 v8, v14, v8, vcc')
    a('s_lshl_b32 s31, s28, 11')
    a('s_add_u32 s31, s31, s100')
    a('s_lshl_b32 s32, s28, 6')
    a('s_add_u32 s32, s32, s98')
    a('s_sub_u32 s32, s32, 192')
    a('s_add_u32 s33, s99, 192')
    a('s_cmp_eq_u32 s28, 6')
    a('s_cselect_b32 s32, s33, s32')
    a('s_cselect_b32 s34, 2, 4')
    a('s_cmp_eq_u32 s28, 7')
    a('s_cselect_b32 s34, 0, s34')
    a('s_cmp_lt_u32 s28, 3')
    a('s_cselect_b32 s86, s31, s32')
    a('s_cselect_b32 s60, s6, s12')
    a('s_cselect_b32 s61, s7, s13')
    a('s_cselect_b32 s62, s38, s46')
    a('s_mov_b32 s63, 0x00020000')
    a('s_movk_i32 s96, 7168')
    a('s_cselect_b32 s96, 6144, s96')
    a('s_mov_b32 s85, %d' % WF_OFF)
    a('s_cselect_b32 s85, %d, s85' % WQ_OFF)
    a('s_add_u32 s85, s85, s86')
    a('v_bfe_u32 v14, v1, 2, 3')
    a('v_lshrrev_b32 v15, 5, v1')
    a('v_lshl_add_u32 v14, v15, 6, v14')
    a('s_lshl_b32 s31, s26, 3')
    a('v_add_u32 v14, s31, v14')
    a('v_mul_lo_u32 v19, v14, s96')
    a('v_and_b32 v14, 3, v1')
    a('v_lshl_add_u32 v19, v14, 4, v19')
    a('v_cmp_gt_u32 vcc, s34, v14')
    a('v_cndmask_b32 v19, v20, v19, vcc')
    a('s_lshl_b32 s84, s96, 7')
    a('v_lshrrev_b32 v14, 1, v4')
    a('v_lshlrev_b32 v14, 3, v14')
    a('v_add_u32 v14, s26, v14')
    a('v_mul_lo_u32 v18, v14, s96')
    a('v_lshl_add_u32 v18, v3, 4, v18')
    a('v_and_b32 v14, 1, v4')
    a('v_lshl_add_u32 v18, v14, 3, v18')
    a('v_cmp_gt_u32 vcc, s34, v3')
    a('v_cndmask_b32 v18, v20, v18, vcc')
    for r in range(ACC, ACC + 104):
        a(f'v_mov_b32 v{r}, 0')
    a('v_mov_b32 v14, 0')
    a('v_mov_b32 v15, 0')
    a('s_mov_b32 s31, 0x3f803f80')
    e.wait(None, ['S'])
    for r in range(244, 252):
        a(f'v_dot2c_f32_bf16 v14, s31, v{r}')
        a(f'v_dot2c_f32_bf16 v15, v{r}, v{r}')
    a('v_permlane32_swap_b32 v14, v15')
    a('v_add_f32 v14, v14, v15')
    a('v_mov_b32 v15, v14')
    a('v_permlane16_swap_b32 v14, v15')
    a('v_add_f32 v14, v14, v15')
    for k in (1, 2, 4, 8):
        a(f'v_add_f32_dpp v14, v14, v14 row_ror:{k} row_mask:0xf bank_mask:0xf')
    a('v_mul_f32 v14, 0x3a800000, v14')
    a('v_readlane_b32 s31, v14, 32')
    a('v_mul_f32 v15, v14, v14')
    a('v_sub_f32 v15, s31, v15')
    a('v_max_f32 v15, 0, v15')
    a('v_cvt_pk_bf16_f32 v244, -v14, -v14')
    a('v_cvt_pk_bf16_f32 v15, 0, v15')
    a('v_add_f32 v15, 0x3727c5ac, v15')
    a('v_cvt_pk_bf16_f32 v15, 0, v15')
    a('v_sqrt_f32 v15, v15')
    a('v_cvt_pk_bf16_f32 v15, 0, v15')
    a('v_lshrrev_b32 v245, 16, v15')
    a('v_rcp_f32 v246, v15')
    a('v_mul_f32 v247, v15, v15')
    a('v_cmp_eq_u32 vcc, 0, v1')
    a('v_cndmask_b32 v14, v20, v1, vcc')
    a('s_lshl_b32 s31, s101, 4')
    a('s_add_u32 s31, s31, %d' % ST_OFF)
    a('s_lshl_b32 s32, s101, 2')
    a('s_add_u32 s32, s32, %d' % RS_OFF)
    a('s_mov_b32 s97, 1')
    e.wait(None, [('B', 0), ('A', 0)])
    a('s_barrier')
    stamp(a, 1)
    for q in range(4): aread(q, 0)
    def rd(m, half):
        t, ct = m // 13, m % 13
        if ct < 6:
            base = 21 + (ct & 1); off = half * 3072 + (ct >> 1) * 64
        else:
            base = 23; off = half * 3584 + (ct - 6) * 32
        r = BF + ct * 4 + half * 2
        e.d(('R', m), f'ds_read_b64_tr_b16 v[{r}:{r+1}], v{base} offset:{off}')
    for m in range(LA):
        rd(m, 0); rd(m, 1)
    e.v('P', 'buffer_store_dwordx4 v[244:247], v14, s[56:59], s31 offen sc1')
    e.v('P', 'buffer_store_dword v246, v14, s[56:59], s32 offen sc1')
    a('s_cmp_lt_u32 s28, 4')
    a('s_cbranch_scc1 L_grpX')

    def hook_H1():
        T = 248; D = 252
        e('v_and_b32 v14, 1, v3')
        e('v_lshlrev_b32 v14, 4, v14')
        e('v_mov_b32 v15, 0x3f80')
        e('v_lshlrev_b32 v14, v14, v15')
        e('v_bfe_u32 v15, v3, 1, 2')
        for r in range(4):
            e(f'v_cmp_eq_u32 vcc, {r}, v15')
            e(f'v_cndmask_b32 v{T+r}, 0, v14, vcc')
        e.wait('H1', ['C', 'C1'])
        for j in range(8):
            c = '0' if j == 0 else f'v[{D}:{D+3}]'
            e(f'v_mfma_f32_16x16x32_bf16 v[{D}:{D+3}], v[{T}:{T+3}], v[{XR+4*j}:{XR+4*j+3}], {c}')
        e.v('P', f'buffer_store_dword v244, v245, s[56:59], s83 offen sc1')
        for k in (4, 8):
            for r in range(4):
                e(f'v_add_f32_dpp v{D+r}, v{D+r}, v{D+r} row_ror:{k} row_mask:0xf bank_mask:0xf')
        e(f'v_cvt_pk_bf16_f32 v14, v{D}, v{D+1}')
        e(f'v_cvt_pk_bf16_f32 v15, v{D+2}, v{D+3}')
        for h in range(2):
            e(f'v_lshlrev_b32 v16, 16, v{14+h}')
            e(f'v_and_b32 v17, 0xffff0000, v{14+h}')
            e(f'v_sub_f32 v{D+2*h}, v{D+2*h}, v16')
            e(f'v_sub_f32 v{D+2*h+1}, v{D+2*h+1}, v17')
        e(f'v_cvt_pk_bf16_f32 v16, v{D}, v{D+1}')
        e(f'v_cvt_pk_bf16_f32 v17, v{D+2}, v{D+3}')
        e('v_cmp_gt_u32 vcc, 2, v4')
        e('v_cndmask_b32 v14, v16, v14, vcc')
        e('v_cndmask_b32 v15, v17, v15, vcc')
        e.v('P', 'buffer_store_dwordx2 v[14:15], v18, s[56:59], s85 offen sc1')
    def hook_H2():
        e('s_mov_b32 s60, s20')
        e('s_mov_b32 s61, s21')
        e('s_cmp_eq_u32 s28, 0')
        e('s_cselect_b32 s62, 64, 0')
        e('s_and_b32 s31, s2, 15')
        e('s_lshl_b32 s31, s31, 2')
        e('v_lshlrev_b32 v14, 6, v1')
        e('v_mov_b32 v15, 1')
        e.v('P', 'buffer_atomic_add v15, v14, s[60:63], s31 offen sc1')
    def hook_H3(g):
        e('s_mov_b32 s60, s20')
        e('s_mov_b32 s61, s21')
        e('s_mov_b32 s62, 64')
        if g == 'X': e('s_mov_b32 s54, 0')
        e('v_lshlrev_b32 v14, 2, v3')
        e.v('PL', f'buffer_load_dword v{XR+16}, v14, s[60:63], 0 offen sc1')
    def hook_H4(g):
        e.wait('H4', ['PL'])
        e(f'v_cmp_gt_u32 vcc, 16, v{XR+16}')
        e('s_mov_b32 s31, 0')
        e(f's_cbranch_vccz L_h4ok{g}')
        if e.mode != 'sim':
            a.label(f'L_h4spin{g}')
            a(f'buffer_load_dword v{XR+16}, v14, s[60:63], 0 offen sc1')
            a('s_add_u32 s31, s31, 1')
            a('s_waitcnt vmcnt(0)')
            a(f'v_cmp_gt_u32 vcc, 16, v{XR+16}')
            a('s_cmp_gt_u32 s31, 200000')
            a(f's_cbranch_scc1 L_h4ok{g}')
            a(f's_cbranch_vccnz L_h4spin{g}')
            a.label(f'L_h4ok{g}')
        if g == 'X':
            e('s_add_u32 s36, s22, %d' % WQ_OFF)
            e('s_addc_u32 s37, s23, 0')
            e('s_mov_b32 s38, %d' % (16 * 6144))
            e('s_add_u32 s44, s22, %d' % WF_OFF)
            e('s_addc_u32 s45, s23, 0')
            e('s_mov_b32 s46, %d' % (17 * 7168))
            e('s_cmp_lt_u32 s29, 2')
            e('s_cselect_b32 s40, s36, s44')
            e('s_cselect_b32 s41, s37, s45')
            e('s_cselect_b32 s42, s38, s46')
            e('s_cmp_eq_u32 s29, 0')
            e('s_cselect_b32 s48, s44, s48')
            e('s_cselect_b32 s49, s45, s49')
            e('s_cselect_b32 s50, s46, s50')
            e('s_cselect_b32 s67, 0, s67')
            e('s_mov_b32 s64, 0')
            e('s_mov_b32 s65, 0')
            e('s_mov_b32 s66, 0')
        if g == 'Y': e('s_mov_b32 s54, 0')
        e('s_lshl_b32 s31, s26, 8')
        e('s_lshl_b32 s32, s28, 5')
        e('s_add_u32 s31, s31, s32')
        e('s_lshl_b32 s32, s31, 2')
        e('s_add_u32 s32, s32, %d' % RS_OFF)
        e('s_lshl_b32 s31, s31, 4')
        e('s_add_u32 s31, s31, %d' % ST_OFF)
        e('v_lshlrev_b32 v14, 4, v3')
        e('v_lshlrev_b32 v15, 4, v4')
        for rt in range(2):
            e.v('ST', f'buffer_load_dwordx4 v[{XR+4*rt}:{XR+4*rt+3}], v14, s[56:59], s31 offen offset:{256*rt} sc1')
        for rt in range(2):
            e.v('ST', f'buffer_load_dwordx4 v[{XR+8+4*rt}:{XR+8+4*rt+3}], v15, s[56:59], s32 offen offset:{64*rt} sc1')

    def mm(ct, rt, A):
        B = BF + ct * 4; D = acc(ct, rt)
        if ct in (4, 5):
            e(f'v_mfma_f32_16x16x32_bf16 v[{D}:{D+3}], v[{A}:{A+3}], v[{B}:{B+3}], v[{D}:{D+3}]')
        else:
            e(f'v_mfma_f32_16x16x32_bf16 v[{D}:{D+3}], v[{B}:{B+3}], v[{A}:{A+3}], v[{D}:{D+3}]')
    def upd(m):
        c = m % 13
        if c == 11:
            e('s_add_u32 s93, s93, 1')
            e('s_cmp_eq_u32 s93, %d' % NSL)
            e('s_cselect_b32 s94, %d, s95' % ((-(NSL - 1) * SLOT) & 0xffffffff))
            e('s_cselect_b32 s93, 0, s93')
        if c == 0: e('v_add_u32 v21, s94, v21')
        if c == 1: e('v_add_u32 v22, s94, v22')
        if c == 6: e('v_add_u32 v23, s94, v23')
    def body(it, g):
        first = it == 0
        bar = LA if g == 'X' else LA + 13
        dp, ar, ad = (dX, arX, adX) if g == 'X' else (dY, arY, adY)
        for n in range(52):
            N = it * 52 + n
            t, ct = N // 13, N % 13
            s = N // 26; rel = N % 26
            if (n + bar) % 26 == 0:
                e.wait(('B', n), [('B', (N + bar) // 26)])
                e('s_barrier')
            upd(N + LA)
            e.wait(('R', n), [], [('R', N)] + ([('AR', t)] if ct == 0 else []))
            for rt in range(2):
                mm(ct, rt, AF + ((t & 3) * 2 + rt) * 4)
                rd(N + LA, rt)
            if rel in dp:
                bdma(dp.index(rel), s + (2 if g == 'X' else 3))
            if rel in ar:
                q = ar.index(rel)
                if q == 0: e.wait(('A', n), [('A', s + 1)])
                aread(q, s + 1)
            if rel in ad:
                p = ad.index(rel)
                late = rel < ar[0]
                if not (first and late and s == 0):
                    adma(p, s + (2 if late else 3))
            if first:
                if n >= 7 and n < 11: adma(n - 7, 2)
                if g == 'Y' and n < 7 and n % 2 == 0: bdma(n // 2, 2)
                if n in cspos:
                    j = cspos.index(n)
                    e.v('C', f'buffer_load_dwordx4 v[{XR+4*j}:{XR+4*j+3}], v19, s[60:63], s86 offen')
                    e('s_add_u32 s86, s86, s84')
                if n == 27:
                    e('s_lshl_b32 s31, s2, 8')
                    e('s_lshl_b32 s32, s2, 11')
                    e('s_lshl_b32 s33, s28, 8')
                    e('s_add_u32 s32, s32, s33')
                    e('s_add_u32 s32, s32, %d' % F3_OFF)
                    e('s_add_u32 s31, s31, %d' % (F1_OFF - 65536))
                    e('v_lshlrev_b32 v14, 16, v1')
                    e('v_add_u32 v14, s31, v14')
                    e('s_cmp_eq_u32 s28, 0')
                    e('s_cselect_b32 s33, 3, 1')
                    e('v_cmp_gt_u32 vcc, s33, v1')
                    e('v_cndmask_b32 v14, v20, v14, vcc')
                    e('v_writelane_b32 v14, s32, 0')
                    e('v_mov_b32 v15, 0')
                    e.v('P', 'buffer_store_dword v15, v14, s[56:59], 0 offen sc1')
                if n == 33:
                    e('s_mov_b32 s72, s8')
                    e('s_mov_b32 s73, s9')
                    e('s_mov_b32 s74, 65536')
                    e('s_mov_b32 s75, 0x00020000')
                    e('s_and_b32 s31, s28, 1')
                    e('s_lshl_b32 s31, s31, 10')
                    e('s_add_u32 m0, s31, %d' % WPHI_LDS)
                    e('s_lshl_b32 s32, s27, 11')
                    e('s_add_u32 s32, s32, s31')
                    e.v('W', 'buffer_load_dwordx4 v11, s[72:75], s32 offen lds')
                if n == 39:
                    e('s_mov_b32 s76, s14')
                    e('s_mov_b32 s77, s15')
                    e('s_mov_b32 s78, 7168')
                    e('s_mov_b32 s79, 0x00020000')
                    e('s_cmp_eq_u32 s28, 7')
                    e('s_cselect_b32 s33, 7, 0')
                    e('v_lshlrev_b32 v245, 2, v1')
                    e('v_cmp_gt_u32 vcc, s33, v1')
                    e('v_cndmask_b32 v245, v20, v245, vcc')
                    e('s_mul_i32 s31, s2, 28')
                    e('s_add_u32 s83, s31, %d' % (WF_OFF + 16 * 7168))
                    e.v('C1', 'buffer_load_dword v244, v245, s[76:79], s31 offen')
            else:
                if n == 25:
                    if e.mode == 'sim':
                        if it == 3 and g == 'X': hook_H2()
                        if it == 6: hook_H3(g)
                    else:
                        a('s_bitcmp1_b32 0x%x, s97' % (0x48 if g == 'X' else 0x40))
                        a(f's_cbranch_scc1 L_mid{g}')
                        a.label(f'L_midr{g}')
                if n == 51:
                    if e.mode == 'sim':
                        if it == 1: hook_H1()
                        if it == 6: hook_H4(g)
                    else:
                        a('s_bitcmp1_b32 0x42, s97')
                        a(f's_cbranch_scc1 L_end{g}')
                        a.label(f'L_endr{g}')
    vm0, lg0 = list(e.vm.ops), list(e.lg.ops)
    tails = {}
    for g in ('Y', 'X'):
        if g == 'X':
            a.label('L_grpX'); a.hist = []
        e.vm.ops, e.lg.ops = list(vm0), list(lg0)
        e.mode = 'direct'
        body(0, g)
        e.mode = 'sim'; e.W = {}
        for it in range(1, 8): body(it, g)
        tails[g] = (list(e.vm.ops), list(e.lg.ops))
        e.mode = 'emit'
        a.raw('.p2align 6')
        a.label(f'L_loop{g}')
        body(1, g)
        a('s_add_u32 s97, s97, 1')
        a('s_cmp_lt_u32 s97, 8')
        a(f's_cbranch_scc1 L_loop{g}')
        a('s_branch L_tail')
        a.label(f'L_mid{g}'); a.hist = []
        if g == 'X':
            a('s_cmp_eq_u32 s97, 6')
            a('s_cbranch_scc1 L_h3X')
            hook_H2()
            a('s_branch L_midrX')
            a.label('L_h3X'); a.hist = []
        hook_H3(g)
        a(f's_branch L_midr{g}')
        a.label(f'L_end{g}'); a.hist = []
        a('s_cmp_eq_u32 s97, 6')
        a(f's_cbranch_scc1 L_h4{g}')
        hook_H1()
        a('s_nop 1')
        a(f's_branch L_endr{g}')
        a.label(f'L_h4{g}'); a.hist = []
        hook_H4(g)
        a(f's_branch L_endr{g}')
    a.label('L_tail'); a.hist = []
    stamp(a, 2)
    e.mode = 'direct'
    e.vm.ops, e.lg.ops = tails['X']
    nst = min(Qn(tails[g][0], 'ST') for g in 'XY')
    assert tails['X'][1][-12:] == tails['Y'][1][-12:]
    AP = XR + 20
    a('s_waitcnt vmcnt(%d)' % nst)
    a('v_cmp_gt_u32 vcc, 2, v4')
    a('v_cmp_eq_u32 s[32:33], 2, v4')
    for rt in range(2):
        a(f'v_cndmask_b32 v{AP+4*rt+1}, 0, v{XR+4*rt}, vcc')
        a(f'v_cndmask_b32 v{AP+4*rt+2}, 0, v{XR+4*rt}, vcc')
        a(f'v_cndmask_b32 v{AP+4*rt+3}, 0, v{XR+4*rt}, vcc')
        a(f'v_cndmask_b32 v{AP+4*rt}, v{AP+4*rt+1}, v{XR+4*rt+1}, s[32:33]')
    WP = XR + 28
    a('v_lshrrev_b32 v14, 2, v1')
    a('v_lshlrev_b32 v14, 6, v14')
    a('v_and_b32 v15, 3, v1')
    a('v_lshl_add_u32 v14, v15, 3, v14')
    a('v_add_u32 v14, %d, v14' % WPHI_LDS)
    for N in range(416, 429):
        ct = N % 13
        if N + LA <= 428: upd(N + LA)
        e.wait(None, [], [('R', N)])
        for rt in range(2):
            mm(ct, rt, AP + 4 * rt)
            if N + LA <= 428: rd(N + LA, rt)
        if N == 423:
            for ft in range(2):
                for half in range(2):
                    e.d('WP', f'ds_read_b64_tr_b16 v[{WP+ft*4+half*2}:{WP+ft*4+half*2+1}], v14 offset:{half*1024+ft*32}')
    RSQ = [XR + 2, XR + 6]; SD2 = [XR + 3, XR + 7]; RSV = [XR + 8, XR + 12]
    a('s_lshl_b32 s80, s26, 14')
    a('s_lshl_b32 s31, s28, 11')
    a('s_add_u32 s80, s80, s31')
    a('s_lshr_b32 s31, s27, 1')
    a('s_and_b32 s32, s27, 1')
    a('s_mul_i32 s42, s31, 7')
    a('s_add_u32 s43, s42, 6')
    a('s_mul_i32 s33, s32, 3')
    a('s_add_u32 s42, s42, s33')
    a('s_lshl_b32 s42, s42, 17')
    a('s_add_u32 s42, s42, s80')
    a('s_add_u32 s42, s42, %d' % HO_OFF)
    a('s_lshl_b32 s43, s43, 17')
    a('s_add_u32 s43, s43, s80')
    a('s_lshl_b32 s33, s32, 3')
    a('s_add_u32 s43, s43, s33')
    a('s_add_u32 s43, s43, %d' % HO_OFF)
    VK = 168
    for dt in range(2):
        for rt in range(2):
            c = acc(4 + dt, rt)
            for r in range(4): a(f'v_mul_f32 v{c+r}, v{c+r}, v{RSV[rt]+r}')
            a(f'v_cvt_pk_bf16_f32 v{VK+4*dt+2*rt}, v{c}, v{c+1}')
            a(f'v_cvt_pk_bf16_f32 v{VK+4*dt+2*rt+1}, v{c+2}, v{c+3}')
    HT = 180
    for i in range(7):
        for rt in range(2):
            c = acc(6 + i, rt)
            for r in range(4): a(f'v_max_f32 v{c+r}, 0, v{c+r}')
        for rt in range(2):
            c = acc(6 + i, rt)
            for r in range(4): a(f'v_mul_f32 v{c+r}, v{c+r}, v{c+r}')
        for rt in range(2):
            c = acc(6 + i, rt)
            o = HT + rt * 4 + (i & 1) * 2 + (i >> 1) * 8
            a(f'v_cvt_pk_bf16_f32 v{o}, v{c}, v{c+1}')
            a(f'v_cvt_pk_bf16_f32 v{o+1}, v{c+2}, v{c+3}')
            if i & 1:
                a(f'buffer_store_dwordx4 v[{o-2}:{o+1}], v11, s[56:59], s42 offen offset:{rt*1024} sc1')
            elif i == 6:
                a(f'buffer_store_dwordx2 v[{o}:{o+1}], v11, s[56:59], s43 offen offset:{rt*1024} sc1')
        if i & 1:
            a('s_add_u32 s42, s42, 0x20000')
    stamp(a, 3)
    a('v_lshlrev_b32 v12, 5, v3')
    a('v_lshl_add_u32 v12, v4, 3, v12')
    a('v_add_u32 v12, s92, v12')
    a('v_add_u32 v13, s92, v11')
    a('s_waitcnt vmcnt(8) lgkmcnt(0)')
    for dt in range(2):
        a(f'ds_write_b128 v13, v[{VK+4*dt}:{VK+4*dt+3}] offset:{4096+dt*1024}')
    Ek, Pk = softmax_pair(a, [(acc(2, 0), acc(3, 0)), (acc(2, 1), acc(3, 1))], WP, BF, RSQ)
    for rt in range(2):
        for ftt in range(4):
            r = (Ek if ftt < 2 else Pk)[rt] + 2 * (ftt & 1)
            a(f'ds_write_b64 v12, v[{r}:{r+1}] offset:{ftt*1024+rt*512}')
    a('s_load_dwordx2 s[12:13], s[0:1], 72')
    a('s_lshr_b32 s81, s28, 1')
    a('s_and_b32 s82, s28, 1')
    a('s_lshl_b32 s31, s81, 10')
    a('v_lshlrev_b32 v12, 3, v1')
    a('v_add_u32 v12, s31, v12')
    a('s_lshl_b32 s31, s82, 10')
    a('v_add_u32 v13, s31, v11')
    KA = BF; KB = BF + 32
    KD = acc(2, 0); KZ = acc(2, 1); ONE = acc(3, 0)
    for r in range(4): a(f'v_mov_b32 v{ONE+r}, 0x3f803f80')
    a('s_lshl_b32 s84, s27, 16')
    a('s_lshl_b32 s31, s28, 10')
    a('s_add_u32 s84, s84, s31')
    a('s_add_u32 s84, s84, %d' % KV_OFF)
    a('s_lshl_b32 s31, s26, 13')
    a('s_add_u32 s85, s84, s31')
    a('s_lshr_b32 s64, s24, 1')
    a('s_and_b32 s65, s24, 1')
    a('s_lshl_b32 s65, s65, 2')
    a('s_and_b32 s31, s25, 3')
    a('s_add_u32 s65, s65, s31')
    a('s_lshr_b32 s66, s25, 2')
    a('s_lshl_b32 s31, s28, 15')
    a('s_lshl_b32 s67, s66, 8')
    a('s_add_u32 s31, s31, s67')
    a('s_lshl_b32 s32, s64, 1')
    a('v_bfe_u32 v14, v1, 1, 3')
    a('v_xor_b32 v14, v14, v4')
    a('v_xor_b32 v14, s32, v14')
    a('v_lshlrev_b32 v5, 11, v4')
    a('v_and_b32 v15, 1, v1')
    a('v_lshl_add_u32 v5, v15, 4, v5')
    a('v_add_u32 v5, s31, v5')
    a('v_xor_b32 v15, 4, v14')
    a('v_lshl_add_u32 v6, v15, 5, v5')
    a('v_add_u32 v6, 8192, v6')
    a('v_lshl_add_u32 v5, v14, 5, v5')
    a('v_add_u32 v7, 16384, v5')
    a('v_add_u32 v8, 16384, v6')
    srd(a, 36, 16, 17, 3584 * 2048)
    srd(a, 40, 10, 11, 1024 * 2048)
    a('s_mul_i32 s68, s64, %d' % (896 * 2048))
    a('s_lshl_b32 s69, s64, 19')
    a('s_lshl_b32 s88, s28, 12')
    def slot2(s): return 32768 * (1 + ((s + 1) & 3))
    def bdma2(q, s):
        e(f's_add_u32 m0, s88, {slot2(s) + 1024 * q}')
        if s < 7:
            e.v(('B2', s), f'buffer_load_dwordx4 v{5+q}, s[36:39], s68 offen lds')
            if q == 3: e('s_add_u32 s68, s68, 0x40000')
        else:
            e.v(('B2', s), f'buffer_load_dwordx4 v{5+q}, s[40:43], s69 offen lds')
            if q == 3: e('s_add_u32 s69, s69, 0x40000')
    a('s_waitcnt lgkmcnt(0)')
    a('s_barrier')
    stamp(a, 4)
    e.vm.ops = []; e.lg.ops = []
    for c in range(8):
        a(f'ds_read_b64_tr_b16 v[{KA+4*c}:{KA+4*c+1}], v12 offset:{c*8192}')
        a(f'ds_read_b64_tr_b16 v[{KA+4*c+2}:{KA+4*c+3}], v12 offset:{c*8192+512}')
        a(f'ds_read_b128 v[{KB+4*c}:{KB+4*c+3}], v13 offset:{4096+c*8192}')
        if c >= 4:
            cc = c - 4
            a('s_waitcnt lgkmcnt(12)')
            z = '0' if cc == 0 else None
            a(f'v_mfma_f32_16x16x32_bf16 v[{KD}:{KD+3}], v[{KA+4*cc}:{KA+4*cc+3}], v[{KB+4*cc}:{KB+4*cc+3}], {z or "v[%d:%d]" % (KD, KD+3)}')
            a(f'v_mfma_f32_16x16x32_bf16 v[{KZ}:{KZ+3}], v[{KA+4*cc}:{KA+4*cc+3}], v[{ONE}:{ONE+3}], {z or "v[%d:%d]" % (KZ, KZ+3)}')
    for cc in range(4, 8):
        a(f's_waitcnt lgkmcnt({3*(7-cc)})')
        a(f'v_mfma_f32_16x16x32_bf16 v[{KD}:{KD+3}], v[{KA+4*cc}:{KA+4*cc+3}], v[{KB+4*cc}:{KB+4*cc+3}], v[{KD}:{KD+3}]')
        a(f'v_mfma_f32_16x16x32_bf16 v[{KZ}:{KZ+3}], v[{KA+4*cc}:{KA+4*cc+3}], v[{ONE}:{ONE+3}], v[{KZ}:{KZ+3}]')
    q = L()
    Eq, Pq = softmax_pair(q, [(acc(0, 0), acc(1, 0)), (acc(0, 1), acc(1, 1))], WP, 172, RSQ)
    for x in q[:12]: a(x)
    KP = acc(3, 1)
    a(f'v_cvt_pk_bf16_f32 v{KP}, v{KD}, v{KD+1}')
    a(f'v_cvt_pk_bf16_f32 v{KP+1}, v{KD+2}, v{KD+3}')
    a(f'v_cvt_pk_bf16_f32 v{KP+2}, v{KZ}, v{KZ+1}')
    a(f'v_cvt_pk_bf16_f32 v{KP+3}, v{KZ+2}, v{KZ+3}')
    e.v('KS', f'buffer_store_dwordx4 v[{KP}:{KP+3}], v11, s[56:59], s85 offen sc1')
    cut = (len(q) * 2) // 5
    dm = [(qq, s) for s in range(3) for qq in range(4)]
    k = 0
    for idx, x in enumerate(q[12:cut]):
        a(x)
        if idx % 6 == 5 and k < 12:
            bdma2(*dm[k]); k += 1
    while k < 12:
        bdma2(*dm[k]); k += 1
    a('s_lshl_b32 s31, s2, 8')
    a('s_add_u32 s31, s31, %d' % F1_OFF)
    a('v_mov_b32 v19, 1')
    a('s_cmp_eq_u32 s28, 0')
    a('s_cselect_b32 s32, 1, 0')
    a('v_cmp_gt_u32 vcc, s32, v1')
    a('v_cndmask_b32 v18, v20, v1, vcc')
    e.wait(None, ['KS'])
    a('s_barrier')
    e.v('F', 'buffer_store_dword v19, v18, s[56:59], s31 offen sc1')
    for x in q[cut:]: a(x)
    stamp(a, 5)
    if dbgpq:
        a('s_lshl_b32 s35, s27, 18')
        a('s_lshl_b32 s31, s80, 1')
        a('s_add_u32 s35, s35, s31')
        a('s_add_u32 s35, s35, %d' % PQ_OFF)
        for rt in range(2):
            e.v('D', f'buffer_store_dwordx4 v[{Eq[rt]}:{Eq[rt]+3}], v11, s[56:59], s35 offen offset:{rt*2048}')
            e.v('D', f'buffer_store_dwordx4 v[{Pq[rt]}:{Pq[rt]+3}], v11, s[56:59], s35 offen offset:{rt*2048+1024}')
    a('v_and_b32 v14, 7, v1')
    a('v_lshrrev_b32 v15, 2, v14')
    a('s_lshl_b32 s31, s64, 1')
    a('v_add_u32 v15, s31, v15')
    a('v_and_b32 v16, 3, v14')
    a('v_lshl_add_u32 v15, v16, 6, v15')
    a('s_lshl_b32 s31, s65, 3')
    a('v_add_u32 v15, s31, v15')
    a('v_lshlrev_b32 v10, 8, v15')
    a('s_andn2_b32 s31, s2, 0x38')
    a('v_lshl_add_u32 v16, v14, 3, s31')
    a('v_lshlrev_b32 v16, 8, v16')
    a('v_and_b32 v14, 8, v1')
    a('v_cmp_eq_u32 vcc, 0, v14')
    a('v_cndmask_b32 v16, v16, v10, vcc')
    a('s_mov_b32 s32, %d' % F1_OFF)
    ACC2 = 24; BF2 = 88; AF2 = 120; NA = AL2 + 1
    def acc2(t, rt): return ACC2 + (t * 2 + rt) * 4
    a('v_mov_b32 v176, v%d' % SD2[0])
    a('v_mov_b32 v177, v%d' % SD2[1])
    a('s_lshl_b32 s31, s65, 14')
    a('s_lshl_b32 s33, s28, 11')
    a('s_add_u32 s89, s31, s33')
    a('v_add_u32 v9, s89, v11')
    srd_off(a, 44, 22, 23, HO_OFF, HO_BYTES)
    a('s_mul_i32 s90, s64, %d' % (28 << 17))
    a('s_lshl_b32 s91, s64, 20')
    a('s_add_u32 s91, s91, %d' % (112 << 17))
    a('s_cmp_lg_u32 s28, 0')
    a('s_cbranch_scc1 L_go1')
    a('s_mov_b32 s34, 0')
    a.label('L_poll1')
    a('buffer_load_dword v17, v16, s[56:59], s32 offen sc1')
    a('s_add_u32 s34, s34, 1')
    a('s_waitcnt vmcnt(0)')
    a('v_cmp_eq_u32 vcc, 0, v17')
    a('s_cmp_gt_u32 s34, 200000')
    a('s_cbranch_scc1 L_go1')
    a('s_cbranch_vccnz L_poll1')
    a.label('L_go1')
    a('v_lshrrev_b32 v14, 2, v1')
    a('v_lshlrev_b32 v12, 8, v14')
    a('v_and_b32 v15, 3, v1')
    a('v_lshl_add_u32 v12, v15, 3, v12')
    a('v_and_b32 v14, 7, v14')
    a('v_lshl_add_u32 v12, v14, 5, v12')
    a('v_add_u32 v12, %d, v12' % slot2(0))
    a('v_mov_b32 v21, v18')
    for t in range(1, 8): a(f'v_xor_b32 v{12+t}, {t*32}, v12')
    e.wait(None, [('B2', 0)])
    a('s_barrier')
    stamp(a, 6)
    def aload2(t, rt):
        if t >= 36: return
        r = AF2 + ((t % NA) * 2 + rt) * 4
        so = 90 if t < 28 else 91
        e.v(('A2', t), f'buffer_load_dwordx4 v[{r}:{r+3}], v9, s[44:47], s{so} offen offset:{1024*rt} sc1')
        if rt == 1: e(f's_add_u32 s{so}, s{so}, 0x20000')
    def rd2(m, half):
        if m >= 288: return
        kk, t = (m // 8) & 3, m % 8
        r = BF2 + t * 4 + half * 2
        e.d(('R2', m), f'ds_read_b64_tr_b16 v[{r}:{r+1}], v{12+t} offset:{kk*8192+half*4096}')
    KVL = XR
    for t in range(2):
        aload2(t, 0); aload2(t, 1)
    for p in range(8):
        e.v('KV', f'buffer_load_dwordx4 v[{KVL+4*p}:{KVL+4*p+3}], v11, s[56:59], s84 offen sc1')
        if p < 7: a('s_add_u32 s84, s84, 8192')
    for t in range(2, AL2):
        aload2(t, 0); aload2(t, 1)
    for m in range(LA2):
        rd2(m, 0); rd2(m, 1)
    for r in range(ACC2, ACC2 + 64): a(f'v_mov_b32 v{r}, 0')
    SEL = 244
    a('v_and_b32 v22, 1, v3')
    a('v_lshlrev_b32 v22, 4, v22')
    a('v_mov_b32 v23, 0x3f80')
    a('v_lshlrev_b32 v22, v22, v23')
    a('v_lshrrev_b32 v23, 1, v3')
    a('v_lshlrev_b32 v0, 1, v4')
    a('v_cmp_eq_u32 vcc, v0, v23')
    a(f'v_cndmask_b32 v{SEL+2}, 0, v22, vcc')
    a('v_add_u32 v0, 1, v0')
    a('v_cmp_eq_u32 vcc, v0, v23')
    a(f'v_cndmask_b32 v{SEL+3}, 0, v22, vcc')
    for r in (0, 1, 4, 5): a(f'v_mov_b32 v{SEL+r}, 0')
    a('s_lshr_b32 s31, s81, 1')
    a('s_mul_i32 s31, s31, 3072')
    a('s_and_b32 s32, s81, 1')
    a('s_lshl_b32 s32, s32, 3')
    a('s_add_u32 s31, s31, s32')
    a('v_add_u32 v23, s31, v11')
    a('s_lshl_b32 s32, s82, 10')
    a('v_add_u32 v22, s32, v23')
    a('s_add_u32 s85, s27, 112')
    a('s_lshl_b32 s85, s85, 17')
    a('s_add_u32 s85, s85, s80')
    a('s_add_u32 s85, s85, %d' % HO_OFF)
    a('s_lshl_b32 s86, s2, 8')
    a('s_add_u32 s86, s86, %d' % F2_OFF)
    a('s_mov_b32 s87, %d' % F2_OFF)
    PT = 200; PZ = 204
    O1 = [('w', ['KV'], [])]
    for p in range(8):
        c0 = '0' if p == 0 else f'v[{PT}:{PT+3}]'
        c1 = '0' if p == 0 else f'v[{PZ}:{PZ+3}]'
        O1.append(f'v_mfma_f32_16x16x32_bf16 v[{PT}:{PT+3}], v[{SEL+2}:{SEL+5}], v[{KVL+4*p}:{KVL+4*p+3}], {c0}')
        O1.append(f'v_mfma_f32_16x16x32_bf16 v[{PZ}:{PZ+3}], v[{SEL}:{SEL+3}], v[{KVL+4*p}:{KVL+4*p+3}], {c1}')
    O1b = [f'v_cvt_pk_bf16_f32 v208, v{PT}, v{PT+1}', f'v_cvt_pk_bf16_f32 v209, v{PT+2}, v{PT+3}',
           f'v_cvt_pk_bf16_f32 v210, v{PZ}, v{PZ+1}', f'v_cvt_pk_bf16_f32 v211, v{PZ+2}, v{PZ+3}',
           ('d', 'OW', 'ds_write_b64 v22, v[208:209]'), ('d', 'OW', 'ds_write_b64 v23, v[210:211] offset:2048')]
    KF = XR
    Dn = [[236, 240], [248, 252]]; Dd = [244, 200]
    O2 = []
    for f in (2, 5, 0, 1, 3, 4):
        O2.append(('d', ('KF', f), f'ds_read_b128 v[{KF+4*f}:{KF+4*f+3}], v11 offset:{1024*f}'))
    O2m = [('w', [], [('KF', 5)])]
    for rt in range(2): O2m.append(f'v_mfma_f32_16x16x32_bf16 v[{Dd[rt]}:{Dd[rt]+3}], v[{KF+8}:{KF+11}], v[{Eq[rt]}:{Eq[rt]+3}], 0')
    for rt in range(2): O2m.append(f'v_mfma_f32_16x16x32_bf16 v[{Dd[rt]}:{Dd[rt]+3}], v[{KF+20}:{KF+23}], v[{Pq[rt]}:{Pq[rt]+3}], v[{Dd[rt]}:{Dd[rt]+3}]')
    O2m.append(('w', [], [('KF', 4)]))
    for rt in range(2):
        for dt in range(2):
            D = Dn[rt][dt]
            O2m.append(f'v_mfma_f32_16x16x32_bf16 v[{D}:{D+3}], v[{KF+4*dt}:{KF+4*dt+3}], v[{Eq[rt]}:{Eq[rt]+3}], 0')
    for rt in range(2):
        for dt in range(2):
            D = Dn[rt][dt]
            O2m.append(f'v_mfma_f32_16x16x32_bf16 v[{D}:{D+3}], v[{KF+12+4*dt}:{KF+12+4*dt+3}], v[{Pq[rt]}:{Pq[rt]+3}], v[{D}:{D+3}]')
    O3 = []
    for rt in range(2):
        O3.append(f'v_add_f32 v{Dd[rt]}, 0x358637bd, v{Dd[rt]}')
    for rt in range(2):
        O3.append(f'v_rcp_f32 v{Dd[rt]}, v{Dd[rt]}')
    for rt in range(2):
        O3.append(f'v_mul_f32 v{Dd[rt]}, v{Dd[rt]}, v{176+rt}')
    for rt in range(2):
        for dt in range(2):
            D = Dn[rt][dt]
            for r in range(4): O3.append(f'v_mul_f32 v{D+r}, v{D+r}, v{Dd[rt]}')
            O3.append(f'v_cvt_pk_bf16_f32 v{204+4*rt+2*dt}, v{D}, v{D+1}')
            O3.append(f'v_cvt_pk_bf16_f32 v{204+4*rt+2*dt+1}, v{D+2}, v{D+3}')
        O3.append(('v', 'OS', f'buffer_store_dwordx4 v[{204+4*rt}:{207+4*rt}], v11, s[56:59], s85 offen offset:{rt*1024} sc1'))
    side = {}
    def put(n, items, per=100):
        i = 0
        while i < len(items):
            side.setdefault(n, []).extend(items[i:i + per]); i += per; n += 1
        return n
    n1 = put(o1pos, O1, 6)
    put(n1 + 1, O1b)
    assert n1 + 1 < 32 - LA2
    n2 = put(o2pos, O2, 2)
    n2 = put(n2 + 2, O2m, 4)
    n2 = put(n2 + 2, O3, 3)
    XX = 212; BB = 220; RS2 = 224
    def fin_setup():
        srd(a, 52, 4, 5, 4 << 20)
        srd(a, 48, 18, 19, 2048)
        a('s_lshl_b32 s31, s89, 5')
        a('s_lshl_b32 s32, s64, 6')
        a('s_add_u32 s32, s32, s67')
        a('s_add_u32 s31, s31, s32')
        a('v_and_b32 v22, 1, v4')
        a('v_lshlrev_b32 v22, 5, v22')
        a('v_lshrrev_b32 v23, 1, v4')
        a('v_lshl_add_u32 v23, v23, 4, v22')
        a('v_lshl_add_u32 v22, v3, 11, v23')
        a('v_add_u32 v22, s31, v22')
        a('v_add_u32 v0, 0x8000, v22')
        a('s_lshr_b32 s33, s89, 2')
        a('s_add_u32 s33, s33, %d' % ST_OFF)
        a('v_lshlrev_b32 v5, 4, v3')
    FIN = [('f', fin_setup),
           ('v', 'X', f'buffer_load_dwordx4 v[{XX}:{XX+3}], v22, s[52:55], 0 offen'),
           ('v', 'X', f'buffer_load_dwordx4 v[{XX+4}:{XX+7}], v0, s[52:55], 0 offen'),
           ('v', 'X', f'buffer_load_dwordx4 v[{BB}:{BB+3}], v23, s[48:51], s32 offen'),
           ('v', 'X', f'buffer_load_dword v{RS2}, v5, s[56:59], s33 offen offset:8 sc1'),
           ('v', 'X', f'buffer_load_dword v{RS2+1}, v5, s[56:59], s33 offen offset:264 sc1')]
    put(226, FIN, 2)
    PLR = 178
    tpo = 8 * (28 - AL2)
    def f2check():
        a(f'v_cmp_eq_u32 vcc, 0, v{PLR}')
        a('s_mov_b32 s34, 0')
        a('s_cbranch_vccz L_go2')
        a.label('L_poll2')
        a(f'buffer_load_dword v{PLR}, v10, s[56:59], s87 offen sc1')
        a('s_add_u32 s34, s34, 1')
        a('s_waitcnt vmcnt(0)')
        a(f'v_cmp_eq_u32 vcc, 0, v{PLR}')
        a('s_cmp_gt_u32 s34, 200000')
        a('s_cbranch_scc1 L_go2')
        a('s_cbranch_vccnz L_poll2')
        a.label('L_go2')
    put(tpo - 24, [('v', 'PL2', f'buffer_load_dword v{PLR}, v10, s[56:59], s87 offen sc1')])
    put(tpo - 1, [('w', ['PL2'], []), ('f', f2check)])
    f2done = False
    for n in range(288):
        t, ct = n // 8, n % 8
        m = n + LA2
        if m % 32 == 0 and m < 288:
            s = m // 32
            tags = [('B2', s)]
            if s == 3: tags.append('OS')
            e.wait(None, tags, ['OW'] if s == 1 else [])
            a('s_barrier')
            if s == 3:
                a('v_mov_b32 v%d, 1' % PLR)
                e.v('F', f'buffer_store_dword v{PLR}, v21, s[56:59], s86 offen sc1')
        if m % 32 < 8 and m >= 32 and m < 288:
            s = m // 32
            a(f'v_add_u32 v{12 + m % 32}, %d, v{12 + m % 32}' % ((slot2(s) - slot2(s - 1)) & 0xffffffff))
        e.wait(None, [('A2', t)] if ct == 0 else [], [('R2', n)])
        for rt in range(2):
            A = AF2 + ((t % NA) * 2 + rt) * 4
            B = BF2 + ct * 4; D = acc2(ct, rt)
            a(f'v_mfma_f32_16x16x32_bf16 v[{D}:{D+3}], v[{B}:{B+3}], v[{A}:{A+3}], v[{D}:{D+3}]')
            rd2(m, rt)
        rel = (n + LA2) % 32
        if rel in (5, 11, 17, 23) and (n + LA2) // 32 + 3 < 9:
            bdma2((5, 11, 17, 23).index(rel), (n + LA2) // 32 + 3)
        if ct in (1, 4): aload2(t + AL2, 0 if ct == 1 else 1)
        for x in side.get(n, []): e.item(x)
    stamp(a, 7)
    a('s_lshl_b32 s31, s65, 3')
    a('s_add_u32 s31, s31, s66')
    a('s_mul_i32 s31, s31, %d' % (4 * 3 * 8 * 2048))
    a('s_lshl_b32 s32, s28, 11')
    a('s_add_u32 s31, s31, s32')
    a('s_add_u32 s31, s31, %d' % EX_OFF)
    PKB = 88
    for u in range(1, 4):
        a(f's_xor_b32 s32, s64, {u}')
        a('s_mul_i32 s32, s32, %d' % (3 * 16384))
        a('s_add_u32 s32, s32, s31')
        if u > 1: a('s_add_u32 s32, s32, %d' % ((u - 1) * 16384))
        for rt in range(2):
            o = PKB + (u - 1) * 8 + rt * 4
            c0, c1 = acc2(2 * u, rt), acc2(2 * u + 1, rt)
            a(f'v_cvt_pk_bf16_f32 v{o}, v{c0}, v{c0+1}')
            a(f'v_cvt_pk_bf16_f32 v{o+1}, v{c0+2}, v{c0+3}')
            a(f'v_cvt_pk_bf16_f32 v{o+2}, v{c1}, v{c1+1}')
            a(f'v_cvt_pk_bf16_f32 v{o+3}, v{c1+2}, v{c1+3}')
            a(f'buffer_store_dwordx4 v[{o}:{o+3}], v11, s[56:59], s32 offen offset:{rt*1024} sc1')
    a('s_lshl_b32 s33, s28, 8')
    a('s_add_u32 s33, s33, %d' % F3_OFF)
    a('v_and_b32 v14, 3, v1')
    a('v_max_u32 v14, 1, v14')
    a('v_lshlrev_b32 v14, 1, v14')
    a('v_xor_b32 v14, s2, v14')
    a('v_lshlrev_b32 v14, 11, v14')
    a('s_lshl_b32 s34, s2, 11')
    a('v_mov_b32 v15, s34')
    a('v_cmp_eq_u32 vcc, 0, v1')
    a('v_cndmask_b32 v15, v20, v15, vcc')
    a('v_mov_b32 v16, 1')
    a('s_mul_i32 s32, s64, %d' % (3 * 16384))
    a('s_add_u32 s32, s32, s31')
    T = 120
    for d in range(4):
        for rt in range(2):
            a(f'v_lshlrev_b32 v{T+8*rt+2*d}, 16, v{XX+4*rt+d}')
            a(f'v_and_b32 v{T+8*rt+2*d+1}, 0xffff0000, v{XX+4*rt+d}')
        a(f'v_lshlrev_b32 v17, 16, v{BB+d}')
        a(f'v_and_b32 v18, 0xffff0000, v{BB+d}')
        for rt in range(2):
            a(f'v_add_f32 v{T+8*rt+2*d}, v{T+8*rt+2*d}, v17')
            a(f'v_add_f32 v{T+8*rt+2*d+1}, v{T+8*rt+2*d+1}, v18')
    for rt in range(2): a(f'v_mul_f32 v{RS2+rt}, v{RS2+rt}, v{RS2+rt}')
    a('s_waitcnt vmcnt(0) lgkmcnt(0)')
    a('buffer_store_dword v16, v15, s[56:59], s33 offen sc1')
    srd(a, 60, 12, 13, 4 << 20)
    a('s_mov_b32 s34, 0')
    a.label('L_poll3')
    a('buffer_load_dword v17, v14, s[56:59], s33 offen sc1')
    a('s_add_u32 s34, s34, 1')
    a('s_waitcnt vmcnt(0)')
    a('v_cmp_eq_u32 vcc, 0, v17')
    a('s_cmp_gt_u32 s34, 200000')
    a('s_cbranch_scc1 L_go3')
    a('s_cbranch_vccnz L_poll3')
    a.label('L_go3')
    stamp(a, 8)
    RX = 136
    for rt in range(2):
        for u in range(3):
            o = RX + (rt * 3 + u) * 4
            a(f's_add_u32 s33, s32, {u*16384}')
            a(f'buffer_load_dwordx4 v[{o}:{o+3}], v11, s[56:59], s33 offen offset:{rt*1024} sc1')
    for rt in range(2):
        c0, c1 = acc2(0, rt), acc2(1, rt)
        for u in range(3):
            o = RX + (rt * 3 + u) * 4
            a(f's_waitcnt vmcnt({5 - (rt*3+u) + rt})')
            for d in range(4):
                c = (c0 if d < 2 else c1) + 2 * (d & 1)
                a(f'v_lshlrev_b32 v17, 16, v{o+d}')
                a(f'v_and_b32 v18, 0xffff0000, v{o+d}')
                a(f'v_add_f32 v{c}, v{c}, v17')
                a(f'v_add_f32 v{c+1}, v{c+1}, v18')
        for r in range(4): a(f'v_permlane16_swap_b32 v{c0+r}, v{c1+r}')
        for r in range(4):
            a(f'v_fma_f32 v{c0+r}, v{c0+r}, v{RS2+rt}, v{T+8*rt+r}')
            a(f'v_fma_f32 v{c1+r}, v{c1+r}, v{RS2+rt}, v{T+8*rt+4+r}')
        o = XX + 4 * rt
        a(f'v_cvt_pk_bf16_f32 v{o}, v{c0}, v{c0+1}')
        a(f'v_cvt_pk_bf16_f32 v{o+1}, v{c0+2}, v{c0+3}')
        a(f'v_cvt_pk_bf16_f32 v{o+2}, v{c1}, v{c1+1}')
        a(f'v_cvt_pk_bf16_f32 v{o+3}, v{c1+2}, v{c1+3}')
        a(f'buffer_store_dwordx4 v[{o}:{o+3}], v{22 if rt == 0 else 0}, s[60:63], 0 offen')
    stamp_final(a, 9)
    a.label('L_done')
    a('s_endpgm')
    return name, '(256,1,1)', '(512,1,1)', LDS_TOTAL, kdesc(name, 256, 102)

def Qn(ops, tag):
    for i in range(len(ops) - 1, -1, -1):
        if ops[i] == tag: return len(ops) - 1 - i
    raise KeyError(tag)

if __name__ == '__main__':
    path = sys.argv[1] if len(sys.argv) > 1 else 'v5.s'
    if '--stamp' in sys.argv: STAMP = True
    kw = {}
    for x in sys.argv[2:]:
        if '=' in x:
            k, v = x.split('='); kw[k] = eval(v)
    build(path, [lambda a: gen_fused(a, **kw)])
```

```python
import sys
from asmlib import *
import gen
from gen import srd, srd_off, kstart, kdesc, build, HO_OFF, HO_BYTES, PQ_OFF
from gen3 import interleave, L, butterfly4

OOB = 0x40000000
KV_OFF = 32 << 20
WQ_OFF = 35 << 20
WF_OFF = WQ_OFF + (128 << 10)
ST_OFF = 36 << 20
RS_OFF = ST_OFF + (64 << 10)
FL_OFF = 38 << 20
F1_OFF = FL_OFF
F2_OFF = FL_OFF + (64 << 10)
F3_OFF = FL_OFF + (128 << 10)
EX_OFF = 40 << 20
WS_BYTES = 56 << 20
STAMP_OFF = 56 << 20
B_LDS = 65536; SLOT = 13312; NSL = 7
JUNK = B_LDS + NSL * SLOT
WPHI_LDS = JUNK + 1024
LDS_TOTAL = 163840
STAMP = False

class Q:
    def __init__(self): self.ops = []
    def issue(self, tag): self.ops.append(tag)
    def need(self, tag):
        for i in range(len(self.ops) - 1, -1, -1):
            if self.ops[i] == tag: return len(self.ops) - 1 - i
        raise KeyError(tag)

class E:
    def __init__(self, a):
        self.a = a; self.vm = Q(); self.lg = Q(); self.mode = 'direct'; self.W = None; self.diag = ''
    def __call__(self, t):
        if self.mode == 'emit' and self.diag:
            d = self.diag
            if 'a' in d and 's[52:55]' in t and 'lds' in t: return
            if 'd' in d and 'lds' in t and 's[52:55]' not in t: return
            if 'r' in d and t.startswith('ds_read_b128'): return
            if 'b' in d and t.startswith('s_barrier'): return
            if 'l' in d and t.startswith('ds_read_b64_tr'): return
            if 'm' in d and t.startswith('v_mfma'): return
        if self.mode != 'sim': self.a(t)
    def v(self, tag, t):
        self.vm.issue(tag); self(t)
    def d(self, tag, t):
        self.lg.issue(tag); self(t)
    def wait(self, key, vm=(), lg=()):
        if self.mode == 'emit':
            nv, nl = self.W[key]
        else:
            nv = min([self.vm.need(t) for t in vm] + [63]); nl = min([self.lg.need(t) for t in lg] + [15])
            if self.mode == 'sim':
                o = self.W.get(key, (63, 15))
                self.W[key] = (min(o[0], nv), min(o[1], nl))
                return
        s = []
        if self.mode == 'emit' and 'w' in self.diag: vm = ()
        if vm and nv < 63: s.append('vmcnt(%d)' % nv)
        if lg: s.append('lgkmcnt(%d)' % nl)
        if s: self.a('s_waitcnt ' + ' '.join(s))
    def item(self, x):
        if isinstance(x, str): self(x)
        elif x[0] == 'v': self.v(x[1], x[2])
        elif x[0] == 'd': self.d(x[1], x[2])
        elif x[0] == 'w': self.wait(None, x[1], x[2])
        elif x[0] == 'f': x[1]()
        else: raise ValueError(x)

def stamp(a, i):
    if not STAMP: return
    a('s_memtime s[70:71]')
    a('s_waitcnt lgkmcnt(0)')
    a(f'v_writelane_b32 v2, s70, {i}')
def stamp_rt(a, i):
    if not STAMP: return
    a('s_memrealtime s[70:71]')
    a('s_waitcnt lgkmcnt(0)')
    a(f'v_writelane_b32 v2, s70, {i}')
def stamp_final(a, n):
    if not STAMP: return
    a('s_waitcnt vmcnt(0)')
    stamp(a, n)
    stamp_rt(a, 31)
    srd_off(a, 72, 22, 23, STAMP_OFF, 1 << 20)
    a('s_lshl_b32 s70, s2, 3')
    a('s_add_u32 s70, s70, s28')
    a('s_lshl_b32 s70, s70, 8')
    a('v_lshlrev_b32 v0, 2, v1')
    a('buffer_store_dword v2, v0, s[72:75], s70 offen')

def softmax_pair(o, C, WP, R, SC):
    P = [R, R + 8]; Ee = [R + 16, R + 24]; Qq = R + 32
    PK = [Qq, Qq + 4]
    for rt in range(2):
        c0, c1 = C[rt]
        for c in (c0, c1):
            for r in range(4): o(f'v_mul_f32 v{c+r}, v{c+r}, v{SC[rt]}')
        o(f'v_cvt_pk_bf16_f32 v{PK[rt]}, v{c0}, v{c0+1}')
        o(f'v_cvt_pk_bf16_f32 v{PK[rt]+1}, v{c0+2}, v{c0+3}')
        o(f'v_cvt_pk_bf16_f32 v{PK[rt]+2}, v{c1}, v{c1+1}')
        o(f'v_cvt_pk_bf16_f32 v{PK[rt]+3}, v{c1+2}, v{c1+3}')
        for ft in range(2):
            o(f'v_mfma_f32_16x16x32_bf16 v[{P[rt]+4*ft}:{P[rt]+4*ft+3}], v[{WP+4*ft}:{WP+4*ft+3}], v[{PK[rt]}:{PK[rt]+3}], 0')
    mx = [Ee[0], Ee[0] + 2]; nm = [Ee[0] + 1, Ee[0] + 3]
    for rt in range(2):
        p = P[rt]
        o(f'v_max3_f32 v{mx[rt]}, v{p}, v{p+1}, v{p+2}')
        o(f'v_max3_f32 v{nm[rt]}, -v{p}, -v{p+1}, -v{p+2}')
    for (x, y) in ((3, 4), (5, 6)):
        for rt in range(2):
            p = P[rt]
            o(f'v_max3_f32 v{mx[rt]}, v{mx[rt]}, v{p+x}, v{p+y}')
            o(f'v_max3_f32 v{nm[rt]}, v{nm[rt]}, -v{p+x}, -v{p+y}')
    m2 = [Qq, Qq + 2]; n2 = [Qq + 1, Qq + 3]
    for rt in range(2):
        p = P[rt]
        o(f'v_max_f32 v{m2[rt]}, v{mx[rt]}, v{p+7}')
        o(f'v_max_f32_e64 v{n2[rt]}, v{nm[rt]}, -v{p+7}')
    mx, nm = m2, n2
    butterfly4(o, 'v_max_f32', mx[0], nm[0], mx[1], nm[1], None, lambda r: o(f'v_mul_f32 v{r}, 0xbfb8aa3b, v{r}'))
    for j in range(8):
        for rt in range(2):
            o(f'v_fmamk_f32 v{Ee[rt]+j}, v{P[rt]+j}, 0x3fb8aa3b, v{mx[rt]}')
            o(f'v_fmamk_f32 v{P[rt]+j}, v{P[rt]+j}, 0xbfb8aa3b, v{nm[rt]}')
    S = [Qq + 4, Qq + 6]; T = [Qq + 5, Qq + 7]
    for j in range(8):
        for rt in range(2):
            o(f'v_exp_f32 v{Ee[rt]+j}, v{Ee[rt]+j}')
            o(f'v_exp_f32 v{P[rt]+j}, v{P[rt]+j}')
        if j == 2:
            for rt in range(2):
                o(f'v_add_f32 v{S[rt]}, v{Ee[rt]}, v{Ee[rt]+1}')
                o(f'v_add_f32 v{T[rt]}, v{P[rt]}, v{P[rt]+1}')
        elif j > 2:
            for rt in range(2):
                o(f'v_add_f32 v{S[rt]}, v{S[rt]}, v{Ee[rt]+j-1}')
                o(f'v_add_f32 v{T[rt]}, v{T[rt]}, v{P[rt]+j-1}')
    for rt in range(2):
        o(f'v_add_f32 v{S[rt]}, v{S[rt]}, v{Ee[rt]+7}')
        o(f'v_add_f32 v{T[rt]}, v{T[rt]}, v{P[rt]+7}')
    butterfly4(o, 'v_add_f32', S[0], T[0], S[1], T[1], None, lambda r: o(f'v_rcp_f32 v{r}, v{r}'))
    for j in range(4):
        for rt in range(2):
            o(f'v_mul_f32 v{Ee[rt]+2*j}, v{Ee[rt]+2*j}, v{S[rt]}')
            o(f'v_mul_f32 v{Ee[rt]+2*j+1}, v{Ee[rt]+2*j+1}, v{S[rt]}')
            o(f'v_mul_f32 v{P[rt]+2*j}, v{P[rt]+2*j}, v{T[rt]}')
            o(f'v_mul_f32 v{P[rt]+2*j+1}, v{P[rt]+2*j+1}, v{T[rt]}')
        for rt in range(2):
            o(f'v_cvt_pk_bf16_f32 v{Ee[rt]+j}, v{Ee[rt]+2*j}, v{Ee[rt]+2*j+1}')
            o(f'v_cvt_pk_bf16_f32 v{P[rt]+j}, v{P[rt]+2*j}, v{P[rt]+2*j+1}')
    return Ee, P

def gen_fused(a, LA=6, LA2=4, bsc1=True, dbgpq=False, stop1=False, role=True, diag='',
              dX=(0, 3, 6, 9), arX=(1, 2, 4, 5), adX=(12, 15, 18, 22),
              dY=(9, 11, 14, 17), arY=(12, 13, 15, 16), adY=(23, 25, 2, 4),
              cspos=(10, 14, 19, 24, 30, 36, 42, 48), o1pos=18, o2pos=30, AL2=5, cpf=0, diag2=''):
    name = 'fused_kernel'
    ACC = 24; BF = 128; AF = 180; XR = 212
    def acc(ct, rt): return ACC + (ct * 2 + rt) * 4
    e = E(a); e.diag = diag
    sc = ' sc1' if bsc1 else ''
    kstart(a, name)
    a('s_cmp_ge_u32 s2, 256')
    a('s_cbranch_scc1 L_done')
    a('s_load_dwordx8 s[4:11], s[0:1], 0')
    a('s_load_dwordx8 s[12:19], s[0:1], 40')
    a('s_load_dwordx4 s[20:23], s[0:1], 80')
    a('s_and_b32 s24, s2, 7')
    a('s_lshr_b32 s25, s2, 3')
    a('s_and_b32 s26, s25, 7')
    a('s_lshr_b32 s31, s25, 3')
    a('s_lshl_b32 s27, s24, 2')
    a('s_add_u32 s27, s27, s31')
    a('v_and_b32 v1, 63, v0')
    a('v_lshrrev_b32 v2, 6, v0')
    a('v_readfirstlane_b32 s28, v2')
    a('v_and_b32 v3, 15, v1')
    a('v_lshrrev_b32 v4, 4, v1')
    a('v_lshlrev_b32 v11, 4, v1')
    a('s_and_b32 s29, s28, 3')
    a('s_lshr_b32 s30, s28, 2')
    a('s_lshl_b32 s35, s30, 5')
    a('s_lshr_b32 s31, s27, 1')
    a('s_and_b32 s32, s27, 1')
    a('s_mul_i32 s33, s31, 448')
    a('s_mul_i32 s98, s32, 192')
    a('s_add_u32 s98, s98, s33')
    a('s_lshl_b32 s99, s32, 5')
    a('s_add_u32 s99, s99, s33')
    a('s_add_u32 s99, s99, 192')
    a('s_lshl_b32 s100, s27, 6')
    a('s_lshl_b32 s31, s26, 8')
    a('s_lshl_b32 s32, s27, 3')
    a('s_add_u32 s101, s31, s32')
    a('s_add_u32 s101, s101, s28')
    a('s_lshl_b32 s34, s101, 11')
    a('s_lshl_b32 s90, s26, 19')
    a('s_lshl_b32 s31, s28, 16')
    a('s_add_u32 s90, s90, s31')
    a('s_add_u32 s91, s90, 0x8000')
    a('s_lshl_b32 s92, s28, 13')
    a('v_lshrrev_b32 v9, 3, v1')
    a('v_lshlrev_b32 v9, 11, v9')
    a('v_and_b32 v14, 7, v1')
    a('v_xor_b32 v14, v14, v4')
    a('v_lshl_add_u32 v9, v14, 4, v9')
    a('v_xor_b32 v10, 64, v9')
    a('v_add_u32 v10, 0x4000, v10')
    def kofR(R, out, t):
        a(f'v_bfe_u32 v{out}, v{R}, 2, 2')
        a(f'v_and_b32 v{t}, 3, v{R}')
        a(f'v_lshl_add_u32 v{out}, v{out}, 3, v{t}')
        a(f'v_lshrrev_b32 v{t}, 4, v{R}')
        a(f'v_lshl_add_u32 v{out}, v{t}, 2, v{out}')
        a(f'v_add_u32 v{out}, s35, v{out}')
    def fQ(dst, sP):
        a(f'v_add_u32 v14, s{sP}, v1')
        a('v_mul_u32_u24 v15, 0x1556, v14')
        a('v_lshrrev_b32 v15, 16, v15')
        a('v_mul_u32_u24 v16, 12, v15')
        a('v_sub_u32 v16, v14, v16')
        kofR(15, 17, 18)
        a(f'v_mul_u32_u24 v{dst}, 6144, v17')
        a('v_lshrrev_b32 v17, 2, v16')
        a(f'v_lshl_add_u32 v{dst}, v17, 11, v{dst}')
        a('v_bfe_u32 v17, v15, 2, 1')
        a('v_lshlrev_b32 v17, 1, v17')
        a('v_xor_b32 v17, v17, v16')
        a('v_and_b32 v17, 3, v17')
        a(f'v_lshl_add_u32 v{dst}, v17, 4, v{dst}')
        a(f'v_add_u32 v{dst}, s100, v{dst}')
    def fF(dst, sP):
        a(f'v_add_u32 v14, s{sP}, v1')
        a('v_mul_u32_u24 v15, 0x124a, v14')
        a('v_lshrrev_b32 v15, 16, v15')
        a('v_mul_u32_u24 v16, 14, v15')
        a('v_sub_u32 v16, v14, v16')
        kofR(15, 17, 18)
        a(f'v_mul_u32_u24 v{dst}, 7168, v17')
        a(f'v_lshl_add_u32 v{dst}, v16, 4, v{dst}')
        a('v_cmp_gt_u32 vcc, 12, v16')
        a('v_cndmask_b32 v17, v20, v19, vcc')
        a(f'v_add_u32 v{dst}, v{dst}, v17')
    a('v_mov_b32 v19, s98')
    a('v_mov_b32 v20, s99')
    a('s_lshl_b32 s31, s29, 6')
    fQ(5, 31)
    a('s_add_u32 s32, s31, 128')
    fF(7, 32)
    a('s_add_u32 s32, s31, 256')
    fQ(6, 32)
    a('s_sub_u32 s32, s31, 128')
    a('s_cmp_lt_u32 s29, 2')
    a('s_cselect_b32 s32, 384, s32')
    fF(8, 32)
    a('s_cmp_lt_u32 s29, 2')
    a('s_cselect_b64 vcc, -1, 0')
    a('v_cndmask_b32 v6, v8, v6, vcc')
    a('s_mov_b32 s64, 0')
    a('s_mov_b32 s65, 0')
    a('s_mov_b32 s66, 0')
    a('s_mov_b32 s67, 0')
    a('s_mov_b32 s68, %d' % (64 * 7168))
    a('s_cselect_b32 s68, %d, s68' % (64 * 6144))
    a('s_mov_b32 s69, %d' % (64 * 7168))
    a('s_mul_i32 s88, s30, %d' % SLOT)
    a('s_lshl_b32 s31, s29, 10')
    a('s_add_u32 s88, s88, s31')
    a('s_add_u32 s88, s88, %d' % B_LDS)
    a('s_add_u32 s87, s31, %d' % (B_LDS + NSL * SLOT))
    a('s_waitcnt lgkmcnt(0)')
    if STAMP:
        stamp_rt(a, 30); stamp(a, 0)
    srd(a, 52, 4, 5, 4 << 20)
    e.v('S', f'buffer_load_dwordx4 v[244:247], v11, s[52:55], s34 offen')
    e.v('S', f'buffer_load_dwordx4 v[248:251], v11, s[52:55], s34 offen offset:1024')
    srd(a, 36, 6, 7, 1024 * 6144)
    srd(a, 44, 12, 13, 1024 * 7168)
    a('s_cmp_lt_u32 s29, 2')
    a('s_cselect_b32 s40, s6, s12')
    a('s_cselect_b32 s41, s7, s13')
    a('s_cselect_b32 s42, s38, s46')
    a('s_mov_b32 s43, 0x00020000')
    a('s_mov_b32 s48, s12')
    a('s_mov_b32 s49, s13')
    a('s_cmp_eq_u32 s29, 0')
    a('s_cselect_b32 s50, s46, 0')
    a('s_mov_b32 s51, 0x00020000')
    def bdma(j, s):
        if j == 0:
            e('s_mov_b32 m0, s88')
            e.v(('B', s), f'buffer_load_dwordx4 v5, s[36:39], s64 offen{sc} lds')
            e('s_add_u32 s64, s64, %d' % (64 * 6144))
        elif j == 1:
            e('s_add_u32 m0, s88, 4096')
            e.v(('B', s), f'buffer_load_dwordx4 v6, s[40:43], s65 offen{sc} lds')
            e('s_add_u32 s65, s65, s68')
        elif j == 2:
            e('s_add_u32 m0, s88, 8192')
            e.v(('B', s), f'buffer_load_dwordx4 v7, s[44:47], s66 offen{sc} lds')
            e('s_add_u32 s66, s66, %d' % (64 * 7168))
        else:
            e('s_add_u32 s89, s88, 12288')
            e('s_cmp_eq_u32 s29, 0')
            e('s_cselect_b32 m0, s89, %d' % JUNK)
            e.v(('B', s), f'buffer_load_dwordx4 v8, s[48:51], s67 offen{sc} lds')
            e('s_add_u32 s67, s67, s69')
            e('s_add_u32 s88, s88, %d' % (2 * SLOT))
            e('s_sub_u32 s89, s88, %d' % (NSL * SLOT))
            e('s_cmp_ge_u32 s88, s87')
            e('s_cselect_b32 s88, s89, s88')
    def adma(p, s):
        e(f's_add_u32 m0, s92, {(s & 1) * 4096 + p * 1024}')
        e.v(('A', s), f'buffer_load_dwordx4 v{9 + (p & 1)}, s[52:55], s{90 + (p >> 1)} offen lds')
        if p == 1: e('s_add_u32 s90, s90, 128')
        if p == 3: e('s_add_u32 s91, s91, 128')
    def aread(q, s):
        kk, rt = q >> 1, q & 1
        r = AF + (((s & 1) * 2 + kk) * 2 + rt) * 4
        e.d(('AR', 2 * s + kk), f'ds_read_b128 v[{r}:{r+3}], v{12 + kk} offset:{(s & 1) * 4096 + rt * 2048}')
    for j in range(4): bdma(j, 0)
    for p in range(4): adma(p, 0)
    for j in range(4): bdma(j, 1)
    for p in range(4): adma(p, 1)
    if cpf:
        a('s_getpc_b64 s[72:73]')
        a.label('L_pc')
        a('v_lshlrev_b32 v14, 7, v0')
        a('v_min_u32 v14, L_done-L_pc, v14')
        e.v('CP', 'global_load_dword v252, v14, s[72:73]')
    srd(a, 56, 22, 23, WS_BYTES)
    a('v_bfe_u32 v14, v3, 1, 3')
    a('v_xor_b32 v14, v14, v4')
    a('v_lshlrev_b32 v12, 7, v3')
    a('v_lshl_add_u32 v12, v14, 4, v12')
    a('v_add_u32 v12, s92, v12')
    a('v_xor_b32 v13, 64, v12')
    a('v_lshrrev_b32 v14, 2, v1')
    a('v_and_b32 v15, 3, v1')
    a('v_lshlrev_b32 v15, 3, v15')
    a('v_mul_u32_u24 v21, 192, v14')
    a('v_add_u32 v21, v21, v15')
    a('v_and_b32 v16, 1, v4')
    a('v_lshl_add_u32 v21, v16, 5, v21')
    a('v_add_u32 v21, %d, v21' % B_LDS)
    a('v_xor_b32 v22, 32, v21')
    a('v_mul_u32_u24 v23, 224, v14')
    a('v_add_u32 v23, v23, v15')
    a('v_add_u32 v23, %d, v23' % (B_LDS + 6144))
    a('s_mov_b32 s93, 0')
    a('s_mov_b32 s94, 0')
    a('s_mov_b32 s95, %d' % SLOT)
    a('v_mov_b32 v20, 0x%x' % OOB)
    a('s_lshr_b32 s31, s24, 1')
    a('s_mul_i32 s32, s30, 3')
    a('s_add_u32 s32, s32, s29')
    a('s_sub_u32 s32, s32, 1')
    a('s_mul_i32 s33, s25, 28')
    a('s_mul_i32 s34, s32, 7')
    a('s_add_u32 s33, s33, s34')
    a('s_mul_i32 s34, s31, %d' % (896 * 16))
    a('s_add_u32 s33, s33, s34')
    a('s_lshl_b32 s34, s31, 12')
    a('s_lshl_b32 s35, s25, 3')
    a('s_add_u32 s34, s34, s35')
    a('s_cmp_eq_u32 s32, 4')
    a('s_cselect_b32 s33, s34, s33')
    a('s_cselect_b32 s34, 8, 7')
    a('s_cselect_b32 s35, %d, %d' % (2, 7))
    a('s_cselect_b32 s60, s10, s16')
    a('s_cselect_b32 s61, s11, s17')
    a('s_mov_b32 s62, %d' % (3584 * 2048))
    a('s_cselect_b32 s62, 0x200000, s62')
    a('s_lshl_b32 s33, s33, 7')
    a('s_lshl_b32 s35, s35, 14')
    a('s_cmp_eq_u32 s32, 5')
    a('s_cselect_b32 s62, 0, s62')
    if not role: a('s_mov_b32 s62, 0')
    a('v_lshlrev_b32 v14, 7, v1')
    a('v_cmp_gt_u32 vcc, s34, v1')
    a('v_cndmask_b32 v14, v20, v14, vcc')
    a('s_cmp_eq_u32 s29, 0')
    a('s_cselect_b32 s48, s48, s60')
    a('s_cselect_b32 s49, s49, s61')
    a('s_cselect_b32 s50, s50, s62')
    a('s_cselect_b32 s67, s67, s33')
    a('s_cselect_b32 s69, s69, s35')
    a('s_cselect_b64 vcc, -1, 0')
    a('v_cndmask_b32 v8, v14, v8, vcc')
    a('s_lshl_b32 s31, s28, 11')
    a('s_add_u32 s31, s31, s100')
    a('s_lshl_b32 s32, s28, 6')
    a('s_add_u32 s32, s32, s98')
    a('s_sub_u32 s32, s32, 192')
    a('s_add_u32 s33, s99, 192')
    a('s_cmp_eq_u32 s28, 6')
    a('s_cselect_b32 s32, s33, s32')
    a('s_cselect_b32 s34, 2, 4')
    a('s_cmp_eq_u32 s28, 7')
    a('s_cselect_b32 s34, 0, s34')
    a('s_cmp_lt_u32 s28, 3')
    a('s_cselect_b32 s86, s31, s32')
    a('s_cselect_b32 s60, s6, s12')
    a('s_cselect_b32 s61, s7, s13')
    a('s_cselect_b32 s62, s38, s46')
    a('s_mov_b32 s63, 0x00020000')
    a('s_movk_i32 s96, 7168')
    a('s_cselect_b32 s96, 6144, s96')
    a('s_mov_b32 s85, %d' % WF_OFF)
    a('s_cselect_b32 s85, %d, s85' % WQ_OFF)
    a('s_add_u32 s85, s85, s86')
    a('v_bfe_u32 v14, v1, 2, 3')
    a('v_lshrrev_b32 v15, 5, v1')
    a('v_lshl_add_u32 v14, v15, 6, v14')
    a('s_lshl_b32 s31, s26, 3')
    a('v_add_u32 v14, s31, v14')
    a('v_mul_lo_u32 v19, v14, s96')
    a('v_and_b32 v14, 3, v1')
    a('v_lshl_add_u32 v19, v14, 4, v19')
    a('v_cmp_gt_u32 vcc, s34, v14')
    a('v_cndmask_b32 v19, v20, v19, vcc')
    a('s_lshl_b32 s84, s96, 7')
    a('v_lshrrev_b32 v14, 1, v4')
    a('v_lshlrev_b32 v14, 3, v14')
    a('v_add_u32 v14, s26, v14')
    a('v_mul_lo_u32 v18, v14, s96')
    a('v_lshl_add_u32 v18, v3, 4, v18')
    a('v_and_b32 v14, 1, v4')
    a('v_lshl_add_u32 v18, v14, 3, v18')
    a('v_cmp_gt_u32 vcc, s34, v3')
    a('v_cndmask_b32 v18, v20, v18, vcc')
    for r in range(ACC, ACC + 104):
        a(f'v_mov_b32 v{r}, 0')
    a('v_mov_b32 v14, 0')
    a('v_mov_b32 v15, 0')
    a('s_mov_b32 s31, 0x3f803f80')
    e.wait(None, ['S'])
    for r in range(244, 252):
        a(f'v_dot2c_f32_bf16 v14, s31, v{r}')
        a(f'v_dot2c_f32_bf16 v15, v{r}, v{r}')
    a('v_permlane32_swap_b32 v14, v15')
    a('v_add_f32 v14, v14, v15')
    a('v_mov_b32 v15, v14')
    a('v_permlane16_swap_b32 v14, v15')
    a('v_add_f32 v14, v14, v15')
    for k in (1, 2, 4, 8):
        a(f'v_add_f32_dpp v14, v14, v14 row_ror:{k} row_mask:0xf bank_mask:0xf')
    a('v_mul_f32 v14, 0x3a800000, v14')
    a('v_readlane_b32 s31, v14, 32')
    a('v_mul_f32 v15, v14, v14')
    a('v_sub_f32 v15, s31, v15')
    a('v_max_f32 v15, 0, v15')
    a('v_cvt_pk_bf16_f32 v244, -v14, -v14')
    a('v_cvt_pk_bf16_f32 v15, 0, v15')
    a('v_add_f32 v15, 0x3727c5ac, v15')
    a('v_cvt_pk_bf16_f32 v15, 0, v15')
    a('v_sqrt_f32 v15, v15')
    a('v_cvt_pk_bf16_f32 v15, 0, v15')
    a('v_lshrrev_b32 v245, 16, v15')
    a('v_rcp_f32 v246, v15')
    a('v_mul_f32 v247, v15, v15')
    a('v_cmp_eq_u32 vcc, 0, v1')
    a('v_cndmask_b32 v14, v20, v1, vcc')
    a('s_lshl_b32 s31, s101, 4')
    a('s_add_u32 s31, s31, %d' % ST_OFF)
    a('s_lshl_b32 s32, s101, 2')
    a('s_add_u32 s32, s32, %d' % RS_OFF)
    a('s_mov_b32 s97, 1')
    e.wait(None, [('B', 0), ('A', 0)])
    a('s_barrier')
    stamp(a, 1)
    for q in range(4): aread(q, 0)
    def rd(m, half):
        t, ct = m // 13, m % 13
        if ct < 6:
            base = 21 + (ct & 1); off = half * 3072 + (ct >> 1) * 64
        else:
            base = 23; off = half * 3584 + (ct - 6) * 32
        r = BF + ct * 4 + half * 2
        e.d(('R', m), f'ds_read_b64_tr_b16 v[{r}:{r+1}], v{base} offset:{off}')
    for m in range(LA):
        rd(m, 0); rd(m, 1)
    e.v('P', 'buffer_store_dwordx4 v[244:247], v14, s[56:59], s31 offen sc1')
    e.v('P', 'buffer_store_dword v246, v14, s[56:59], s32 offen sc1')
    a('s_cmp_lt_u32 s28, 4')
    a('s_cbranch_scc1 L_grpX')

    def hook_H1():
        T = 248; D = 252
        e('v_and_b32 v14, 1, v3')
        e('v_lshlrev_b32 v14, 4, v14')
        e('v_mov_b32 v15, 0x3f80')
        e('v_lshlrev_b32 v14, v14, v15')
        e('v_bfe_u32 v15, v3, 1, 2')
        for r in range(4):
            e(f'v_cmp_eq_u32 vcc, {r}, v15')
            e(f'v_cndmask_b32 v{T+r}, 0, v14, vcc')
        e.wait('H1', ['C', 'C1'])
        for j in range(8):
            c = '0' if j == 0 else f'v[{D}:{D+3}]'
            e(f'v_mfma_f32_16x16x32_bf16 v[{D}:{D+3}], v[{T}:{T+3}], v[{XR+4*j}:{XR+4*j+3}], {c}')
        e.v('P', f'buffer_store_dword v244, v245, s[56:59], s83 offen sc1')
        for k in (4, 8):
            for r in range(4):
                e(f'v_add_f32_dpp v{D+r}, v{D+r}, v{D+r} row_ror:{k} row_mask:0xf bank_mask:0xf')
        e(f'v_cvt_pk_bf16_f32 v14, v{D}, v{D+1}')
        e(f'v_cvt_pk_bf16_f32 v15, v{D+2}, v{D+3}')
        for h in range(2):
            e(f'v_lshlrev_b32 v16, 16, v{14+h}')
            e(f'v_and_b32 v17, 0xffff0000, v{14+h}')
            e(f'v_sub_f32 v{D+2*h}, v{D+2*h}, v16')
            e(f'v_sub_f32 v{D+2*h+1}, v{D+2*h+1}, v17')
        e(f'v_cvt_pk_bf16_f32 v16, v{D}, v{D+1}')
        e(f'v_cvt_pk_bf16_f32 v17, v{D+2}, v{D+3}')
        e('v_cmp_gt_u32 vcc, 2, v4')
        e('v_cndmask_b32 v14, v16, v14, vcc')
        e('v_cndmask_b32 v15, v17, v15, vcc')
        e.v('P', 'buffer_store_dwordx2 v[14:15], v18, s[56:59], s85 offen sc1')
    def hook_H2():
        e('s_mov_b32 s60, s20')
        e('s_mov_b32 s61, s21')
        e('s_cmp_eq_u32 s28, 0')
        e('s_cselect_b32 s62, 64, 0')
        e('s_and_b32 s31, s2, 15')
        e('s_lshl_b32 s31, s31, 2')
        e('v_lshlrev_b32 v14, 6, v1')
        e('v_mov_b32 v15, 1')
        e.v('P', 'buffer_atomic_add v15, v14, s[60:63], s31 offen sc1')
    def hook_H3(g):
        e('s_mov_b32 s60, s20')
        e('s_mov_b32 s61, s21')
        e('s_mov_b32 s62, 64')
        if g == 'X': e('s_mov_b32 s54, 0')
        e('v_lshlrev_b32 v14, 2, v3')
        e.v('PL', f'buffer_load_dword v{XR+16}, v14, s[60:63], 0 offen sc1')
    def hook_H4(g):
        e.wait('H4', ['PL'])
        e(f'v_cmp_gt_u32 vcc, 16, v{XR+16}')
        e('s_mov_b32 s31, 0')
        e(f's_cbranch_vccz L_h4ok{g}')
        if e.mode != 'sim':
            a.label(f'L_h4spin{g}')
            a(f'buffer_load_dword v{XR+16}, v14, s[60:63], 0 offen sc1')
            a('s_add_u32 s31, s31, 1')
            a('s_waitcnt vmcnt(0)')
            a(f'v_cmp_gt_u32 vcc, 16, v{XR+16}')
            a('s_cmp_gt_u32 s31, 200000')
            a(f's_cbranch_scc1 L_h4ok{g}')
            a(f's_cbranch_vccnz L_h4spin{g}')
            a.label(f'L_h4ok{g}')
        if g == 'X':
            e('s_add_u32 s36, s22, %d' % WQ_OFF)
            e('s_addc_u32 s37, s23, 0')
            e('s_mov_b32 s38, %d' % (16 * 6144))
            e('s_add_u32 s44, s22, %d' % WF_OFF)
            e('s_addc_u32 s45, s23, 0')
            e('s_mov_b32 s46, %d' % (17 * 7168))
            e('s_cmp_lt_u32 s29, 2')
            e('s_cselect_b32 s40, s36, s44')
            e('s_cselect_b32 s41, s37, s45')
            e('s_cselect_b32 s42, s38, s46')
            e('s_cmp_eq_u32 s29, 0')
            e('s_cselect_b32 s48, s44, s48')
            e('s_cselect_b32 s49, s45, s49')
            e('s_cselect_b32 s50, s46, s50')
            e('s_cselect_b32 s67, 0, s67')
            e('s_mov_b32 s64, 0')
            e('s_mov_b32 s65, 0')
            e('s_mov_b32 s66, 0')
        if g == 'Y': e('s_mov_b32 s54, 0')
        e('s_lshl_b32 s31, s26, 8')
        e('s_lshl_b32 s32, s28, 5')
        e('s_add_u32 s31, s31, s32')
        e('s_lshl_b32 s32, s31, 2')
        e('s_add_u32 s32, s32, %d' % RS_OFF)
        e('s_lshl_b32 s31, s31, 4')
        e('s_add_u32 s31, s31, %d' % ST_OFF)
        e('v_lshlrev_b32 v14, 4, v3')
        e('v_lshlrev_b32 v15, 4, v4')
        for rt in range(2):
            e.v('ST', f'buffer_load_dwordx4 v[{XR+4*rt}:{XR+4*rt+3}], v14, s[56:59], s31 offen offset:{256*rt} sc1')
        for rt in range(2):
            e.v('ST', f'buffer_load_dwordx4 v[{XR+8+4*rt}:{XR+8+4*rt+3}], v15, s[56:59], s32 offen offset:{64*rt} sc1')

    def mm(ct, rt, A):
        B = BF + ct * 4; D = acc(ct, rt)
        if ct in (4, 5):
            e(f'v_mfma_f32_16x16x32_bf16 v[{D}:{D+3}], v[{A}:{A+3}], v[{B}:{B+3}], v[{D}:{D+3}]')
        else:
            e(f'v_mfma_f32_16x16x32_bf16 v[{D}:{D+3}], v[{B}:{B+3}], v[{A}:{A+3}], v[{D}:{D+3}]')
    def upd(m):
        c = m % 13
        if c == 11:
            e('s_add_u32 s93, s93, 1')
            e('s_cmp_eq_u32 s93, %d' % NSL)
            e('s_cselect_b32 s94, %d, s95' % ((-(NSL - 1) * SLOT) & 0xffffffff))
            e('s_cselect_b32 s93, 0, s93')
        if c == 0: e('v_add_u32 v21, s94, v21')
        if c == 1: e('v_add_u32 v22, s94, v22')
        if c == 6: e('v_add_u32 v23, s94, v23')
    def body(it, g):
        first = it == 0
        bar = LA if g == 'X' else LA + 13
        dp, ar, ad = (dX, arX, adX) if g == 'X' else (dY, arY, adY)
        for n in range(52):
            N = it * 52 + n
            t, ct = N // 13, N % 13
            s = N // 26; rel = N % 26
            if (n + bar) % 26 == 0:
                e.wait(('B', n), [('B', (N + bar) // 26)])
                e('s_barrier')
            upd(N + LA)
            e.wait(('R', n), [], [('R', N)] + ([('AR', t)] if ct == 0 else []))
            for rt in range(2):
                mm(ct, rt, AF + ((t & 3) * 2 + rt) * 4)
                rd(N + LA, rt)
            if rel in dp:
                bdma(dp.index(rel), s + (2 if g == 'X' else 3))
            if rel in ar:
                q = ar.index(rel)
                if q == 0: e.wait(('A', n), [('A', s + 1)])
                aread(q, s + 1)
            if rel in ad:
                p = ad.index(rel)
                late = rel < ar[0]
                if not (first and late and s == 0):
                    adma(p, s + (2 if late else 3))
            if first:
                if n >= 7 and n < 11: adma(n - 7, 2)
                if g == 'Y' and n < 7 and n % 2 == 0: bdma(n // 2, 2)
                if n in cspos:
                    j = cspos.index(n)
                    e.v('C', f'buffer_load_dwordx4 v[{XR+4*j}:{XR+4*j+3}], v19, s[60:63], s86 offen')
                    e('s_add_u32 s86, s86, s84')
                if n == 27:
                    e('s_lshl_b32 s31, s2, 8')
                    e('s_lshl_b32 s32, s2, 11')
                    e('s_lshl_b32 s33, s28, 8')
                    e('s_add_u32 s32, s32, s33')
                    e('s_add_u32 s32, s32, %d' % F3_OFF)
                    e('s_add_u32 s31, s31, %d' % (F1_OFF - 65536))
                    e('v_lshlrev_b32 v14, 16, v1')
                    e('v_add_u32 v14, s31, v14')
                    e('s_cmp_eq_u32 s28, 0')
                    e('s_cselect_b32 s33, 3, 1')
                    e('v_cmp_gt_u32 vcc, s33, v1')
                    e('v_cndmask_b32 v14, v20, v14, vcc')
                    e('v_writelane_b32 v14, s32, 0')
                    e('v_mov_b32 v15, 0')
                    e.v('P', 'buffer_store_dword v15, v14, s[56:59], 0 offen sc1')
                if n == 33:
                    e('s_mov_b32 s72, s8')
                    e('s_mov_b32 s73, s9')
                    e('s_mov_b32 s74, 65536')
                    e('s_mov_b32 s75, 0x00020000')
                    e('s_and_b32 s31, s28, 1')
                    e('s_lshl_b32 s31, s31, 10')
                    e('s_add_u32 m0, s31, %d' % WPHI_LDS)
                    e('s_lshl_b32 s32, s27, 11')
                    e('s_add_u32 s32, s32, s31')
                    e.v('W', 'buffer_load_dwordx4 v11, s[72:75], s32 offen lds')
                if n == 39:
                    e('s_mov_b32 s76, s14')
                    e('s_mov_b32 s77, s15')
                    e('s_mov_b32 s78, 7168')
                    e('s_mov_b32 s79, 0x00020000')
                    e('s_cmp_eq_u32 s28, 7')
                    e('s_cselect_b32 s33, 7, 0')
                    e('v_lshlrev_b32 v245, 2, v1')
                    e('v_cmp_gt_u32 vcc, s33, v1')
                    e('v_cndmask_b32 v245, v20, v245, vcc')
                    e('s_mul_i32 s31, s2, 28')
                    e('s_add_u32 s83, s31, %d' % (WF_OFF + 16 * 7168))
                    e.v('C1', 'buffer_load_dword v244, v245, s[76:79], s31 offen')
            else:
                if n == 25:
                    if e.mode == 'sim':
                        if it == 3 and g == 'X': hook_H2()
                        if it == 6: hook_H3(g)
                    else:
                        a('s_bitcmp1_b32 0x%x, s97' % (0x48 if g == 'X' else 0x40))
                        a(f's_cbranch_scc1 L_mid{g}')
                        a.label(f'L_midr{g}')
                if n == 51:
                    if e.mode == 'sim':
                        if it == 1: hook_H1()
                        if it == 6: hook_H4(g)
                    else:
                        a('s_bitcmp1_b32 0x42, s97')
                        a(f's_cbranch_scc1 L_end{g}')
                        a.label(f'L_endr{g}')
    vm0, lg0 = list(e.vm.ops), list(e.lg.ops)
    tails = {}
    for g in ('Y', 'X'):
        if g == 'X':
            a.label('L_grpX'); a.hist = []
        e.vm.ops, e.lg.ops = list(vm0), list(lg0)
        e.mode = 'direct'
        body(0, g)
        stamp(a, 10)
        e.mode = 'sim'; e.W = {}
        for it in range(1, 8): body(it, g)
        tails[g] = (list(e.vm.ops), list(e.lg.ops))
        e.mode = 'emit'
        a.raw('.p2align 6')
        a.label(f'L_loop{g}')
        body(1, g)
        a('s_add_u32 s97, s97, 1')
        a('s_cmp_lt_u32 s97, 8')
        a(f's_cbranch_scc1 L_loop{g}')
        a('s_branch L_tail')
        a.label(f'L_mid{g}'); a.hist = []
        if g == 'X':
            a('s_cmp_eq_u32 s97, 6')
            a('s_cbranch_scc1 L_h3X')
            hook_H2()
            a('s_branch L_midrX')
            a.label('L_h3X'); a.hist = []
        hook_H3(g)
        a(f's_branch L_midr{g}')
        a.label(f'L_end{g}'); a.hist = []
        a('s_cmp_eq_u32 s97, 6')
        a(f's_cbranch_scc1 L_h4{g}')
        stamp(a, 11)
        hook_H1()
        stamp(a, 12)
        a('s_nop 1')
        a(f's_branch L_endr{g}')
        a.label(f'L_h4{g}'); a.hist = []
        stamp(a, 13)
        hook_H4(g)
        stamp(a, 14)
        a(f's_branch L_endr{g}')
    a.label('L_tail'); a.hist = []
    stamp(a, 2)
    e.mode = 'direct'
    e.vm.ops, e.lg.ops = tails['X']
    nst = min(Qn(tails[g][0], 'ST') for g in 'XY')
    assert tails['X'][1][-12:] == tails['Y'][1][-12:]
    AP = XR + 20
    a('s_waitcnt vmcnt(%d)' % nst)
    a('v_cmp_gt_u32 vcc, 2, v4')
    a('v_cmp_eq_u32 s[32:33], 2, v4')
    for rt in range(2):
        a(f'v_cndmask_b32 v{AP+4*rt+1}, 0, v{XR+4*rt}, vcc')
        a(f'v_cndmask_b32 v{AP+4*rt+2}, 0, v{XR+4*rt}, vcc')
        a(f'v_cndmask_b32 v{AP+4*rt+3}, 0, v{XR+4*rt}, vcc')
        a(f'v_cndmask_b32 v{AP+4*rt}, v{AP+4*rt+1}, v{XR+4*rt+1}, s[32:33]')
    WP = XR + 28
    a('v_lshrrev_b32 v14, 2, v1')
    a('v_lshlrev_b32 v14, 6, v14')
    a('v_and_b32 v15, 3, v1')
    a('v_lshl_add_u32 v14, v15, 3, v14')
    a('v_add_u32 v14, %d, v14' % WPHI_LDS)
    for N in range(416, 429):
        ct = N % 13
        if N + LA <= 428: upd(N + LA)
        e.wait(None, [], [('R', N)])
        for rt in range(2):
            mm(ct, rt, AP + 4 * rt)
            if N + LA <= 428: rd(N + LA, rt)
        if N == 423:
            for ft in range(2):
                for half in range(2):
                    e.d('WP', f'ds_read_b64_tr_b16 v[{WP+ft*4+half*2}:{WP+ft*4+half*2+1}], v14 offset:{half*1024+ft*32}')
    RSQ = [XR + 2, XR + 6]; SD2 = [XR + 3, XR + 7]; RSV = [XR + 8, XR + 12]
    a('s_lshl_b32 s80, s26, 14')
    a('s_lshl_b32 s31, s28, 11')
    a('s_add_u32 s80, s80, s31')
    a('s_lshr_b32 s31, s27, 1')
    a('s_and_b32 s32, s27, 1')
    a('s_mul_i32 s42, s31, 7')
    a('s_add_u32 s43, s42, 6')
    a('s_mul_i32 s33, s32, 3')
    a('s_add_u32 s42, s42, s33')
    a('s_lshl_b32 s42, s42, 17')
    a('s_add_u32 s42, s42, s80')
    a('s_add_u32 s42, s42, %d' % HO_OFF)
    a('s_lshl_b32 s43, s43, 17')
    a('s_add_u32 s43, s43, s80')
    a('s_lshl_b32 s33, s32, 3')
    a('s_add_u32 s43, s43, s33')
    a('s_add_u32 s43, s43, %d' % HO_OFF)
    VK = 168
    for dt in range(2):
        for rt in range(2):
            c = acc(4 + dt, rt)
            for r in range(4): a(f'v_mul_f32 v{c+r}, v{c+r}, v{RSV[rt]+r}')
            a(f'v_cvt_pk_bf16_f32 v{VK+4*dt+2*rt}, v{c}, v{c+1}')
            a(f'v_cvt_pk_bf16_f32 v{VK+4*dt+2*rt+1}, v{c+2}, v{c+3}')
    HT = 180
    for i in range(7):
        for rt in range(2):
            c = acc(6 + i, rt)
            for r in range(4): a(f'v_max_f32 v{c+r}, 0, v{c+r}')
        for rt in range(2):
            c = acc(6 + i, rt)
            for r in range(4): a(f'v_mul_f32 v{c+r}, v{c+r}, v{c+r}')
        for rt in range(2):
            c = acc(6 + i, rt)
            o = HT + rt * 4 + (i & 1) * 2 + (i >> 1) * 8
            a(f'v_cvt_pk_bf16_f32 v{o}, v{c}, v{c+1}')
            a(f'v_cvt_pk_bf16_f32 v{o+1}, v{c+2}, v{c+3}')
            if i & 1:
                a(f'buffer_store_dwordx4 v[{o-2}:{o+1}], v11, s[56:59], s42 offen offset:{rt*1024} sc1')
            elif i == 6:
                a(f'buffer_store_dwordx2 v[{o}:{o+1}], v11, s[56:59], s43 offen offset:{rt*1024} sc1')
        if i & 1:
            a('s_add_u32 s42, s42, 0x20000')
    stamp(a, 3)
    a('v_lshlrev_b32 v12, 5, v3')
    a('v_lshl_add_u32 v12, v4, 3, v12')
    a('v_add_u32 v12, s92, v12')
    a('v_add_u32 v13, s92, v11')
    a('s_waitcnt vmcnt(8) lgkmcnt(0)')
    for dt in range(2):
        a(f'ds_write_b128 v13, v[{VK+4*dt}:{VK+4*dt+3}] offset:{4096+dt*1024}')
    Ek, Pk = softmax_pair(a, [(acc(2, 0), acc(3, 0)), (acc(2, 1), acc(3, 1))], WP, BF, RSQ)
    for rt in range(2):
        for ftt in range(4):
            r = (Ek if ftt < 2 else Pk)[rt] + 2 * (ftt & 1)
            a(f'ds_write_b64 v12, v[{r}:{r+1}] offset:{ftt*1024+rt*512}')
    a('s_load_dwordx2 s[12:13], s[0:1], 72')
    a('s_lshr_b32 s81, s28, 1')
    a('s_and_b32 s82, s28, 1')
    a('s_lshl_b32 s31, s81, 10')
    a('v_lshlrev_b32 v12, 3, v1')
    a('v_add_u32 v12, s31, v12')
    a('s_lshl_b32 s31, s82, 10')
    a('v_add_u32 v13, s31, v11')
    KA = BF; KB = BF + 32
    KD = acc(2, 0); KZ = acc(2, 1); ONE = acc(3, 0)
    for r in range(4): a(f'v_mov_b32 v{ONE+r}, 0x3f803f80')
    a('s_lshl_b32 s84, s27, 16')
    a('s_lshl_b32 s31, s28, 10')
    a('s_add_u32 s84, s84, s31')
    a('s_add_u32 s84, s84, %d' % KV_OFF)
    a('s_lshl_b32 s31, s26, 13')
    a('s_add_u32 s85, s84, s31')
    a('s_lshr_b32 s64, s24, 1')
    a('s_and_b32 s65, s24, 1')
    a('s_lshl_b32 s65, s65, 2')
    a('s_and_b32 s31, s25, 3')
    a('s_add_u32 s65, s65, s31')
    a('s_lshr_b32 s66, s25, 2')
    a('s_lshl_b32 s31, s28, 15')
    a('s_lshl_b32 s67, s66, 8')
    a('s_add_u32 s31, s31, s67')
    a('s_lshl_b32 s32, s64, 1')
    a('v_bfe_u32 v14, v1, 1, 3')
    a('v_xor_b32 v14, v14, v4')
    a('v_xor_b32 v14, s32, v14')
    a('v_lshlrev_b32 v5, 11, v4')
    a('v_and_b32 v15, 1, v1')
    a('v_lshl_add_u32 v5, v15, 4, v5')
    a('v_add_u32 v5, s31, v5')
    a('v_xor_b32 v15, 4, v14')
    a('v_lshl_add_u32 v6, v15, 5, v5')
    a('v_add_u32 v6, 8192, v6')
    a('v_lshl_add_u32 v5, v14, 5, v5')
    a('v_add_u32 v7, 16384, v5')
    a('v_add_u32 v8, 16384, v6')
    srd(a, 36, 16, 17, 3584 * 2048)
    srd(a, 40, 10, 11, 1024 * 2048)
    a('s_mul_i32 s68, s64, %d' % (896 * 2048))
    a('s_lshl_b32 s69, s64, 19')
    a('s_lshl_b32 s88, s28, 12')
    def slot2(s): return 32768 * (1 + ((s + 1) & 3))
    def bdma2(q, s):
        if 'D' in diag2 and s >= 3:
            e.vm.ops.insert(0, ('B2', s)); return
        e(f's_add_u32 m0, s88, {slot2(s) + 1024 * q}')
        if s < 7:
            e.v(('B2', s), f'buffer_load_dwordx4 v{5+q}, s[36:39], s68 offen lds')
            if q == 3: e('s_add_u32 s68, s68, 0x40000')
        else:
            e.v(('B2', s), f'buffer_load_dwordx4 v{5+q}, s[40:43], s69 offen lds')
            if q == 3: e('s_add_u32 s69, s69, 0x40000')
    a('s_waitcnt lgkmcnt(0)')
    a('s_barrier')
    stamp(a, 4)
    e.vm.ops = []; e.lg.ops = []
    for c in range(8):
        a(f'ds_read_b64_tr_b16 v[{KA+4*c}:{KA+4*c+1}], v12 offset:{c*8192}')
        a(f'ds_read_b64_tr_b16 v[{KA+4*c+2}:{KA+4*c+3}], v12 offset:{c*8192+512}')
        a(f'ds_read_b128 v[{KB+4*c}:{KB+4*c+3}], v13 offset:{4096+c*8192}')
        if c >= 4:
            cc = c - 4
            a('s_waitcnt lgkmcnt(12)')
            z = '0' if cc == 0 else None
            a(f'v_mfma_f32_16x16x32_bf16 v[{KD}:{KD+3}], v[{KA+4*cc}:{KA+4*cc+3}], v[{KB+4*cc}:{KB+4*cc+3}], {z or "v[%d:%d]" % (KD, KD+3)}')
            a(f'v_mfma_f32_16x16x32_bf16 v[{KZ}:{KZ+3}], v[{KA+4*cc}:{KA+4*cc+3}], v[{ONE}:{ONE+3}], {z or "v[%d:%d]" % (KZ, KZ+3)}')
    for cc in range(4, 8):
        a(f's_waitcnt lgkmcnt({3*(7-cc)})')
        a(f'v_mfma_f32_16x16x32_bf16 v[{KD}:{KD+3}], v[{KA+4*cc}:{KA+4*cc+3}], v[{KB+4*cc}:{KB+4*cc+3}], v[{KD}:{KD+3}]')
        a(f'v_mfma_f32_16x16x32_bf16 v[{KZ}:{KZ+3}], v[{KA+4*cc}:{KA+4*cc+3}], v[{ONE}:{ONE+3}], v[{KZ}:{KZ+3}]')
    q = L()
    Eq, Pq = softmax_pair(q, [(acc(0, 0), acc(1, 0)), (acc(0, 1), acc(1, 1))], WP, 172, RSQ)
    for x in q[:12]: a(x)
    KP = acc(3, 1)
    a(f'v_cvt_pk_bf16_f32 v{KP}, v{KD}, v{KD+1}')
    a(f'v_cvt_pk_bf16_f32 v{KP+1}, v{KD+2}, v{KD+3}')
    a(f'v_cvt_pk_bf16_f32 v{KP+2}, v{KZ}, v{KZ+1}')
    a(f'v_cvt_pk_bf16_f32 v{KP+3}, v{KZ+2}, v{KZ+3}')
    e.v('KS', f'buffer_store_dwordx4 v[{KP}:{KP+3}], v11, s[56:59], s85 offen sc1')
    cut = (len(q) * 2) // 5
    dm = [(qq, s) for s in range(3) for qq in range(4)]
    k = 0
    for idx, x in enumerate(q[12:cut]):
        a(x)
        if idx % 6 == 5 and k < 12:
            bdma2(*dm[k]); k += 1
    while k < 12:
        bdma2(*dm[k]); k += 1
    a('s_lshl_b32 s31, s2, 8')
    a('s_add_u32 s31, s31, %d' % F1_OFF)
    a('v_mov_b32 v19, 1')
    a('s_cmp_eq_u32 s28, 0')
    a('s_cselect_b32 s32, 1, 0')
    a('v_cmp_gt_u32 vcc, s32, v1')
    a('v_cndmask_b32 v18, v20, v1, vcc')
    e.wait(None, ['KS'])
    a('s_barrier')
    e.v('F', 'buffer_store_dword v19, v18, s[56:59], s31 offen sc1')
    for x in q[cut:]: a(x)
    stamp(a, 5)
    if dbgpq:
        a('s_lshl_b32 s35, s27, 18')
        a('s_lshl_b32 s31, s80, 1')
        a('s_add_u32 s35, s35, s31')
        a('s_add_u32 s35, s35, %d' % PQ_OFF)
        for rt in range(2):
            e.v('D', f'buffer_store_dwordx4 v[{Eq[rt]}:{Eq[rt]+3}], v11, s[56:59], s35 offen offset:{rt*2048}')
            e.v('D', f'buffer_store_dwordx4 v[{Pq[rt]}:{Pq[rt]+3}], v11, s[56:59], s35 offen offset:{rt*2048+1024}')
    a('v_and_b32 v14, 7, v1')
    a('v_lshrrev_b32 v15, 2, v14')
    a('s_lshl_b32 s31, s64, 1')
    a('v_add_u32 v15, s31, v15')
    a('v_and_b32 v16, 3, v14')
    a('v_lshl_add_u32 v15, v16, 6, v15')
    a('s_lshl_b32 s31, s65, 3')
    a('v_add_u32 v15, s31, v15')
    a('v_lshlrev_b32 v10, 8, v15')
    a('s_andn2_b32 s31, s2, 0x38')
    a('v_lshl_add_u32 v16, v14, 3, s31')
    a('v_lshlrev_b32 v16, 8, v16')
    a('v_and_b32 v14, 8, v1')
    a('v_cmp_eq_u32 vcc, 0, v14')
    a('v_cndmask_b32 v16, v16, v10, vcc')
    a('s_mov_b32 s32, %d' % F1_OFF)
    ACC2 = 24; BF2 = 88; AF2 = 120; NA = AL2 + 1
    def acc2(t, rt): return ACC2 + (t * 2 + rt) * 4
    a('v_mov_b32 v176, v%d' % SD2[0])
    a('v_mov_b32 v177, v%d' % SD2[1])
    a('s_lshl_b32 s31, s65, 14')
    a('s_lshl_b32 s33, s28, 11')
    a('s_add_u32 s89, s31, s33')
    a('v_add_u32 v9, s89, v11')
    srd_off(a, 44, 22, 23, HO_OFF, HO_BYTES)
    a('s_mul_i32 s90, s64, %d' % (28 << 17))
    a('s_lshl_b32 s91, s64, 20')
    a('s_add_u32 s91, s91, %d' % (112 << 17))
    a('s_cmp_lg_u32 s28, 0')
    a('s_cbranch_scc1 L_go1')
    a('s_mov_b32 s34, 0')
    a.label('L_poll1')
    a('buffer_load_dword v17, v16, s[56:59], s32 offen sc1')
    a('s_add_u32 s34, s34, 1')
    a('s_waitcnt vmcnt(0)')
    a('v_cmp_eq_u32 vcc, 0, v17')
    a('s_cmp_gt_u32 s34, 200000')
    a('s_cbranch_scc1 L_go1')
    a('s_cbranch_vccnz L_poll1')
    a.label('L_go1')
    a('v_lshrrev_b32 v14, 2, v1')
    a('v_lshlrev_b32 v12, 8, v14')
    a('v_and_b32 v15, 3, v1')
    a('v_lshl_add_u32 v12, v15, 3, v12')
    a('v_and_b32 v14, 7, v14')
    a('v_lshl_add_u32 v12, v14, 5, v12')
    a('v_add_u32 v12, %d, v12' % slot2(0))
    a('v_mov_b32 v21, v18')
    for t in range(1, 8): a(f'v_xor_b32 v{12+t}, {t*32}, v12')
    e.wait(None, [('B2', 0)])
    a('s_barrier')
    stamp(a, 6)
    def aload2(t, rt):
        if t >= 36: return
        r = AF2 + ((t % NA) * 2 + rt) * 4
        so = 90 if t < 28 else 91
        if 'A' in diag2 and t >= 6: e.vm.issue(('A2', t)); e.vm.ops.pop(); e.vm.ops.insert(0, ('A2', t))
        else: e.v(('A2', t), f'buffer_load_dwordx4 v[{r}:{r+3}], v9, s[44:47], s{so} offen offset:{1024*rt}' + ('' if 'S' in diag2 else ' sc1'))
        if rt == 1: e(f's_add_u32 s{so}, s{so}, 0x20000')
    def rd2(m, half):
        if m >= 288: return
        kk, t = (m // 8) & 3, m % 8
        r = BF2 + t * 4 + half * 2
        if 'L' in diag2 and m >= 8:
            e.lg.ops.insert(0, ('R2', m)); return
        e.d(('R2', m), f'ds_read_b64_tr_b16 v[{r}:{r+1}], v{12+t} offset:{kk*8192+half*4096}')
    KVL = XR
    for t in range(2):
        aload2(t, 0); aload2(t, 1)
    for p in range(8):
        e.v('KV', f'buffer_load_dwordx4 v[{KVL+4*p}:{KVL+4*p+3}], v11, s[56:59], s84 offen sc1')
        if p < 7: a('s_add_u32 s84, s84, 8192')
    for t in range(2, AL2):
        aload2(t, 0); aload2(t, 1)
    for m in range(LA2):
        rd2(m, 0); rd2(m, 1)
    for r in range(ACC2, ACC2 + 64): a(f'v_mov_b32 v{r}, 0')
    SEL = 244
    a('v_and_b32 v22, 1, v3')
    a('v_lshlrev_b32 v22, 4, v22')
    a('v_mov_b32 v23, 0x3f80')
    a('v_lshlrev_b32 v22, v22, v23')
    a('v_lshrrev_b32 v23, 1, v3')
    a('v_lshlrev_b32 v0, 1, v4')
    a('v_cmp_eq_u32 vcc, v0, v23')
    a(f'v_cndmask_b32 v{SEL+2}, 0, v22, vcc')
    a('v_add_u32 v0, 1, v0')
    a('v_cmp_eq_u32 vcc, v0, v23')
    a(f'v_cndmask_b32 v{SEL+3}, 0, v22, vcc')
    for r in (0, 1, 4, 5): a(f'v_mov_b32 v{SEL+r}, 0')
    a('s_lshr_b32 s31, s81, 1')
    a('s_mul_i32 s31, s31, 3072')
    a('s_and_b32 s32, s81, 1')
    a('s_lshl_b32 s32, s32, 3')
    a('s_add_u32 s31, s31, s32')
    a('v_add_u32 v23, s31, v11')
    a('s_lshl_b32 s32, s82, 10')
    a('v_add_u32 v22, s32, v23')
    a('s_add_u32 s85, s27, 112')
    a('s_lshl_b32 s85, s85, 17')
    a('s_add_u32 s85, s85, s80')
    a('s_add_u32 s85, s85, %d' % HO_OFF)
    a('s_lshl_b32 s86, s2, 8')
    a('s_add_u32 s86, s86, %d' % F2_OFF)
    a('s_mov_b32 s87, %d' % F2_OFF)
    PT = 200; PZ = 204
    O1 = [('w', ['KV'], [])]
    for p in range(8):
        c0 = '0' if p == 0 else f'v[{PT}:{PT+3}]'
        c1 = '0' if p == 0 else f'v[{PZ}:{PZ+3}]'
        O1.append(f'v_mfma_f32_16x16x32_bf16 v[{PT}:{PT+3}], v[{SEL+2}:{SEL+5}], v[{KVL+4*p}:{KVL+4*p+3}], {c0}')
        O1.append(f'v_mfma_f32_16x16x32_bf16 v[{PZ}:{PZ+3}], v[{SEL}:{SEL+3}], v[{KVL+4*p}:{KVL+4*p+3}], {c1}')
    O1b = [f'v_cvt_pk_bf16_f32 v208, v{PT}, v{PT+1}', f'v_cvt_pk_bf16_f32 v209, v{PT+2}, v{PT+3}',
           f'v_cvt_pk_bf16_f32 v210, v{PZ}, v{PZ+1}', f'v_cvt_pk_bf16_f32 v211, v{PZ+2}, v{PZ+3}',
           ('d', 'OW', 'ds_write_b64 v22, v[208:209]'), ('d', 'OW', 'ds_write_b64 v23, v[210:211] offset:2048')]
    KF = XR
    Dn = [[236, 240], [248, 252]]; Dd = [244, 200]
    O2 = []
    for f in (2, 5, 0, 1, 3, 4):
        O2.append(('d', ('KF', f), f'ds_read_b128 v[{KF+4*f}:{KF+4*f+3}], v11 offset:{1024*f}'))
    O2m = [('w', [], [('KF', 5)])]
    for rt in range(2): O2m.append(f'v_mfma_f32_16x16x32_bf16 v[{Dd[rt]}:{Dd[rt]+3}], v[{KF+8}:{KF+11}], v[{Eq[rt]}:{Eq[rt]+3}], 0')
    for rt in range(2): O2m.append(f'v_mfma_f32_16x16x32_bf16 v[{Dd[rt]}:{Dd[rt]+3}], v[{KF+20}:{KF+23}], v[{Pq[rt]}:{Pq[rt]+3}], v[{Dd[rt]}:{Dd[rt]+3}]')
    O2m.append(('w', [], [('KF', 4)]))
    for rt in range(2):
        for dt in range(2):
            D = Dn[rt][dt]
            O2m.append(f'v_mfma_f32_16x16x32_bf16 v[{D}:{D+3}], v[{KF+4*dt}:{KF+4*dt+3}], v[{Eq[rt]}:{Eq[rt]+3}], 0')
    for rt in range(2):
        for dt in range(2):
            D = Dn[rt][dt]
            O2m.append(f'v_mfma_f32_16x16x32_bf16 v[{D}:{D+3}], v[{KF+12+4*dt}:{KF+12+4*dt+3}], v[{Pq[rt]}:{Pq[rt]+3}], v[{D}:{D+3}]')
    O3 = []
    for rt in range(2):
        O3.append(f'v_add_f32 v{Dd[rt]}, 0x358637bd, v{Dd[rt]}')
    for rt in range(2):
        O3.append(f'v_rcp_f32 v{Dd[rt]}, v{Dd[rt]}')
    for rt in range(2):
        O3.append(f'v_mul_f32 v{Dd[rt]}, v{Dd[rt]}, v{176+rt}')
    for rt in range(2):
        for dt in range(2):
            D = Dn[rt][dt]
            for r in range(4): O3.append(f'v_mul_f32 v{D+r}, v{D+r}, v{Dd[rt]}')
            O3.append(f'v_cvt_pk_bf16_f32 v{204+4*rt+2*dt}, v{D}, v{D+1}')
            O3.append(f'v_cvt_pk_bf16_f32 v{204+4*rt+2*dt+1}, v{D+2}, v{D+3}')
        O3.append(('v', 'OS', f'buffer_store_dwordx4 v[{204+4*rt}:{207+4*rt}], v11, s[56:59], s85 offen offset:{rt*1024} sc1'))
    side = {}
    def put(n, items, per=100):
        i = 0
        while i < len(items):
            side.setdefault(n, []).extend(items[i:i + per]); i += per; n += 1
        return n
    n1 = put(o1pos, O1, 6)
    put(n1 + 1, O1b)
    assert n1 + 1 < 32 - LA2
    n2 = put(o2pos, O2, 2)
    n2 = put(n2 + 2, O2m, 4)
    n2 = put(n2 + 2, O3, 3)
    XX = 212; BB = 220; RS2 = 224
    def fin_setup():
        srd(a, 52, 4, 5, 4 << 20)
        srd(a, 48, 18, 19, 2048)
        a('s_lshl_b32 s31, s89, 5')
        a('s_lshl_b32 s32, s64, 6')
        a('s_add_u32 s32, s32, s67')
        a('s_add_u32 s31, s31, s32')
        a('v_and_b32 v22, 1, v4')
        a('v_lshlrev_b32 v22, 5, v22')
        a('v_lshrrev_b32 v23, 1, v4')
        a('v_lshl_add_u32 v23, v23, 4, v22')
        a('v_lshl_add_u32 v22, v3, 11, v23')
        a('v_add_u32 v22, s31, v22')
        a('v_add_u32 v0, 0x8000, v22')
        a('s_lshr_b32 s33, s89, 2')
        a('s_add_u32 s33, s33, %d' % ST_OFF)
        a('v_lshlrev_b32 v5, 4, v3')
    FIN = [('f', fin_setup),
           ('v', 'X', f'buffer_load_dwordx4 v[{XX}:{XX+3}], v22, s[52:55], 0 offen'),
           ('v', 'X', f'buffer_load_dwordx4 v[{XX+4}:{XX+7}], v0, s[52:55], 0 offen'),
           ('v', 'X', f'buffer_load_dwordx4 v[{BB}:{BB+3}], v23, s[48:51], s32 offen'),
           ('v', 'X', f'buffer_load_dword v{RS2}, v5, s[56:59], s33 offen offset:8 sc1'),
           ('v', 'X', f'buffer_load_dword v{RS2+1}, v5, s[56:59], s33 offen offset:264 sc1')]
    put(226, FIN, 2)
    PLR = 178
    tpo = 8 * (28 - AL2)
    def f2check():
        a(f'v_cmp_eq_u32 vcc, 0, v{PLR}')
        a('s_mov_b32 s34, 0')
        a('s_cbranch_vccz L_go2')
        a.label('L_poll2')
        a(f'buffer_load_dword v{PLR}, v10, s[56:59], s87 offen sc1')
        a('s_add_u32 s34, s34, 1')
        a('s_waitcnt vmcnt(0)')
        a(f'v_cmp_eq_u32 vcc, 0, v{PLR}')
        a('s_cmp_gt_u32 s34, 200000')
        a('s_cbranch_scc1 L_go2')
        a('s_cbranch_vccnz L_poll2')
        a.label('L_go2')
    put(tpo - 24, [('v', 'PL2', f'buffer_load_dword v{PLR}, v10, s[56:59], s87 offen sc1')])
    put(tpo - 1, [('w', ['PL2'], []), ('f', f2check)])
    f2done = False
    for n in range(288):
        t, ct = n // 8, n % 8
        m = n + LA2
        if m % 32 == 0 and m < 288:
            s = m // 32
            tags = [('B2', s)]
            if s == 3: tags.append('OS')
            e.wait(None, tags, ['OW'] if s == 1 else [])
            if not ('B' in diag2 and s > 3): a('s_barrier')
            if s == 3:
                a('v_mov_b32 v%d, 1' % PLR)
                e.v('F', f'buffer_store_dword v{PLR}, v21, s[56:59], s86 offen sc1')
        if m % 32 < 8 and m >= 32 and m < 288:
            s = m // 32
            a(f'v_add_u32 v{12 + m % 32}, %d, v{12 + m % 32}' % ((slot2(s) - slot2(s - 1)) & 0xffffffff))
        e.wait(None, [('A2', t)] if ct == 0 else [], [('R2', n)])
        for rt in range(2):
            A = AF2 + ((t % NA) * 2 + rt) * 4
            B = BF2 + ct * 4; D = acc2(ct, rt)
            if 'M' not in diag2: a(f'v_mfma_f32_16x16x32_bf16 v[{D}:{D+3}], v[{B}:{B+3}], v[{A}:{A+3}], v[{D}:{D+3}]')
            rd2(m, rt)
        rel = (n + LA2) % 32
        if rel in (5, 11, 17, 23) and (n + LA2) // 32 + 3 < 9:
            bdma2((5, 11, 17, 23).index(rel), (n + LA2) // 32 + 3)
        if ct in (1, 4): aload2(t + AL2, 0 if ct == 1 else 1)
        for x in side.get(n, []): e.item(x)
    stamp(a, 7)
    a('s_lshl_b32 s31, s65, 3')
    a('s_add_u32 s31, s31, s66')
    a('s_mul_i32 s31, s31, %d' % (4 * 3 * 8 * 2048))
    a('s_lshl_b32 s32, s28, 11')
    a('s_add_u32 s31, s31, s32')
    a('s_add_u32 s31, s31, %d' % EX_OFF)
    PKB = 88
    for u in range(1, 4):
        a(f's_xor_b32 s32, s64, {u}')
        a('s_mul_i32 s32, s32, %d' % (3 * 16384))
        a('s_add_u32 s32, s32, s31')
        if u > 1: a('s_add_u32 s32, s32, %d' % ((u - 1) * 16384))
        for rt in range(2):
            o = PKB + (u - 1) * 8 + rt * 4
            c0, c1 = acc2(2 * u, rt), acc2(2 * u + 1, rt)
            a(f'v_cvt_pk_bf16_f32 v{o}, v{c0}, v{c0+1}')
            a(f'v_cvt_pk_bf16_f32 v{o+1}, v{c0+2}, v{c0+3}')
            a(f'v_cvt_pk_bf16_f32 v{o+2}, v{c1}, v{c1+1}')
            a(f'v_cvt_pk_bf16_f32 v{o+3}, v{c1+2}, v{c1+3}')
            a(f'buffer_store_dwordx4 v[{o}:{o+3}], v11, s[56:59], s32 offen offset:{rt*1024} sc1')
    a('s_lshl_b32 s33, s28, 8')
    a('s_add_u32 s33, s33, %d' % F3_OFF)
    a('v_and_b32 v14, 3, v1')
    a('v_max_u32 v14, 1, v14')
    a('v_lshlrev_b32 v14, 1, v14')
    a('v_xor_b32 v14, s2, v14')
    a('v_lshlrev_b32 v14, 11, v14')
    a('s_lshl_b32 s34, s2, 11')
    a('v_mov_b32 v15, s34')
    a('v_cmp_eq_u32 vcc, 0, v1')
    a('v_cndmask_b32 v15, v20, v15, vcc')
    a('v_mov_b32 v16, 1')
    a('s_mul_i32 s32, s64, %d' % (3 * 16384))
    a('s_add_u32 s32, s32, s31')
    T = 120
    for d in range(4):
        for rt in range(2):
            a(f'v_lshlrev_b32 v{T+8*rt+2*d}, 16, v{XX+4*rt+d}')
            a(f'v_and_b32 v{T+8*rt+2*d+1}, 0xffff0000, v{XX+4*rt+d}')
        a(f'v_lshlrev_b32 v17, 16, v{BB+d}')
        a(f'v_and_b32 v18, 0xffff0000, v{BB+d}')
        for rt in range(2):
            a(f'v_add_f32 v{T+8*rt+2*d}, v{T+8*rt+2*d}, v17')
            a(f'v_add_f32 v{T+8*rt+2*d+1}, v{T+8*rt+2*d+1}, v18')
    for rt in range(2): a(f'v_mul_f32 v{RS2+rt}, v{RS2+rt}, v{RS2+rt}')
    a('s_waitcnt vmcnt(0) lgkmcnt(0)')
    a('buffer_store_dword v16, v15, s[56:59], s33 offen sc1')
    srd(a, 60, 12, 13, 4 << 20)
    a('s_mov_b32 s34, 0')
    a.label('L_poll3')
    a('buffer_load_dword v17, v14, s[56:59], s33 offen sc1')
    a('s_add_u32 s34, s34, 1')
    a('s_waitcnt vmcnt(0)')
    a('v_cmp_eq_u32 vcc, 0, v17')
    a('s_cmp_gt_u32 s34, 200000')
    a('s_cbranch_scc1 L_go3')
    a('s_cbranch_vccnz L_poll3')
    a.label('L_go3')
    stamp(a, 8)
    RX = 136
    for rt in range(2):
        for u in range(3):
            o = RX + (rt * 3 + u) * 4
            a(f's_add_u32 s33, s32, {u*16384}')
            a(f'buffer_load_dwordx4 v[{o}:{o+3}], v11, s[56:59], s33 offen offset:{rt*1024} sc1')
    for rt in range(2):
        c0, c1 = acc2(0, rt), acc2(1, rt)
        for u in range(3):
            o = RX + (rt * 3 + u) * 4
            a(f's_waitcnt vmcnt({5 - (rt*3+u) + rt})')
            for d in range(4):
                c = (c0 if d < 2 else c1) + 2 * (d & 1)
                a(f'v_lshlrev_b32 v17, 16, v{o+d}')
                a(f'v_and_b32 v18, 0xffff0000, v{o+d}')
                a(f'v_add_f32 v{c}, v{c}, v17')
                a(f'v_add_f32 v{c+1}, v{c+1}, v18')
        for r in range(4): a(f'v_permlane16_swap_b32 v{c0+r}, v{c1+r}')
        for r in range(4):
            a(f'v_fma_f32 v{c0+r}, v{c0+r}, v{RS2+rt}, v{T+8*rt+r}')
            a(f'v_fma_f32 v{c1+r}, v{c1+r}, v{RS2+rt}, v{T+8*rt+4+r}')
        o = XX + 4 * rt
        a(f'v_cvt_pk_bf16_f32 v{o}, v{c0}, v{c0+1}')
        a(f'v_cvt_pk_bf16_f32 v{o+1}, v{c0+2}, v{c0+3}')
        a(f'v_cvt_pk_bf16_f32 v{o+2}, v{c1}, v{c1+1}')
        a(f'v_cvt_pk_bf16_f32 v{o+3}, v{c1+2}, v{c1+3}')
        a(f'buffer_store_dwordx4 v[{o}:{o+3}], v{22 if rt == 0 else 0}, s[60:63], 0 offen')
    stamp_final(a, 9)
    a.label('L_done')
    a('s_endpgm')
    return name, '(256,1,1)', '(512,1,1)', LDS_TOTAL, kdesc(name, 256, 102)

def Qn(ops, tag):
    for i in range(len(ops) - 1, -1, -1):
        if ops[i] == tag: return len(ops) - 1 - i
    raise KeyError(tag)

if __name__ == '__main__':
    path = sys.argv[1] if len(sys.argv) > 1 else 'v5.s'
    if '--stamp' in sys.argv: STAMP = True
    kw = {}
    for x in sys.argv[2:]:
        if '=' in x:
            k, v = x.split('='); kw[k] = eval(v)
    build(path, [lambda a: gen_fused(a, **kw)])
```
